```python
import torch

def _softmax(x, axis=-1):
    return torch.softmax(x, dim=axis)
def _gelu(x):
    return torch.nn.functional.gelu(x, approximate="tanh")
def _silu(x):
    return torch.nn.functional.silu(x)
def _sigmoid(x):
    return torch.sigmoid(x)
def _layernorm(x, axis=-1, eps=1e-5):
    m = x.mean(dim=axis, keepdim=True)
    v = x.var(dim=axis, keepdim=True, unbiased=False)
    return (x - m) / torch.sqrt(v + eps)
def _scatter_add(tgt, idx, src, axis=0):
    return tgt.clone().index_add_(axis, idx, src)
def _segment_sum(src, seg, n):
    out = torch.zeros((n,) + src.shape[1:], dtype=src.dtype)
    return out.index_add_(0, seg, src)
def _pad(x, pw):
    flat = tuple(v for pair in reversed(pw) for v in pair)
    return torch.nn.functional.pad(x, flat)

kernel_name = 'parallel_sum__ssm_conv_s4d__glu_gated_reglu__prompt'

def setup_inputs():

    _w = (lambda a: (lambda t: t.to(torch.bfloat16) if t.is_floating_point() else t)(torch.as_tensor(a)))
    def _A_setup():
        Bsz, L, D, N = 1, 2048, 512, 128
        return {
            "u": _w((lambda *s: torch.randn(*s, dtype=torch.bfloat16) * 0.05)(Bsz, L, D)),
            "log_A_real": _w((lambda *s: torch.randn(*s, dtype=torch.bfloat16) * 3.2)(D, N) * 0.5),
            "A_imag": _w((lambda *s: torch.randn(*s, dtype=torch.bfloat16) * 0.05)(D, N) * 3.14),
            "C_real": _w((lambda *s: torch.randn(*s, dtype=torch.bfloat16) * 0.1)(D, N) / N ** 0.5),
            "C_imag": _w((lambda *s: torch.randn(*s, dtype=torch.bfloat16) * 0.2)(D, N) / N ** 0.5),
            "log_dt": _w((lambda *s: torch.randn(*s, dtype=torch.bfloat16) * 0.05)(D) * 0.5 - 4.0),
            "D_skip": _w((lambda *s: torch.randn(*s, dtype=torch.bfloat16) * 0.05)(D)),
        }
    _A_in = _A_setup()

    def _B_setup():
        B, S, D, F = 1, 2048, 512, 1376
        return {
            "x": _w((lambda *s: torch.randn(*s, dtype=torch.bfloat16) * 0.05)(B, S, D)),
            "W_gate": _w((lambda *s: torch.randn(*s, dtype=torch.bfloat16) * 0.4)(D, F) * (2.0 / D) ** 0.5),
            "W_up": _w((lambda *s: torch.randn(*s, dtype=torch.bfloat16) * 0.4)(D, F) * (2.0 / D) ** 0.5),
            "W_down": _w((lambda *s: torch.randn(*s, dtype=torch.bfloat16) * 0.4)(F, D) * (1.0 / F) ** 0.5),
        }
    _B_in = _B_setup()

    return {
        "A_u": _A_in["u"],
        "A_log_A_real": _A_in["log_A_real"],
        "A_A_imag": _A_in["A_imag"],
        "A_C_real": _A_in["C_real"],
        "A_C_imag": _A_in["C_imag"],
        "A_log_dt": _A_in["log_dt"],
        "A_D_skip": _A_in["D_skip"],
        "B_x": _B_in["x"],
        "B_W_gate": _B_in["W_gate"],
        "B_W_up": _B_in["W_up"],
        "B_W_down": _B_in["W_down"],
    }

def reference(A_u, A_log_A_real, A_A_imag, A_C_real, A_C_imag, A_log_dt, A_D_skip, B_x, B_W_gate, B_W_up, B_W_down):
    def _A_ref(u, log_A_real, A_imag, C_real, C_imag, log_dt, D_skip):
        L = u.shape[1]
        dt = torch.exp(log_dt)
        A = -torch.exp(log_A_real) + 1j * A_imag
        C = (C_real + 1j * C_imag) * dt[:, None]
        pos = (lambda x, dt: x.to(dt))(torch.arange(L), log_dt.dtype)
        P = torch.exp((A * dt[:, None])[:, :, None] * pos[None, None, :])
        K = 2.0 * torch.einsum("dn,dnl->dl", C, P).real
        L2 = 2 * L
        u_t = (lambda x, *d: x.permute(*d))(u, 0, 2, 1)
        Kf = (lambda x, *a, **k: torch.fft.rfft(x.float(), *a, **k))(K, L2)
        Uf = (lambda x, *a, **k: torch.fft.rfft(x.float(), *a, **k))(u_t, L2)
        y = (lambda x, *a, **k: torch.fft.irfft(x, *a, **k).to(torch.bfloat16))(Uf * Kf[None, :, :], L2)[:, :, :L]
        y = (lambda x, *d: x.permute(*d))(y, 0, 2, 1)
        return y + u * D_skip[None, None, :]

    def _B_ref(x, W_gate, W_up, W_down):
        gate = torch.einsum("bsd,df->bsf", x, W_gate)
        up = torch.einsum("bsd,df->bsf", x, W_up)
        gate = gate * (lambda x, dt: x.to(dt))(gate > 0, gate.dtype)
        h = gate * up
        return torch.einsum("bsf,fd->bsd", h, W_down)

    x = A_u
    xn = _layernorm(x, axis=-1)
    return x + _A_ref(xn, A_log_A_real, A_A_imag, A_C_real, A_C_imag, A_log_dt, A_D_skip) + _B_ref(xn, B_W_gate, B_W_up, B_W_down)
```

```python
import re

TRANS = ("v_exp_f32", "v_log_f32", "v_rcp_f32", "v_rsq_f32", "v_sqrt_f32", "v_sin_f32", "v_cos_f32")


def regs_of(op):
    op = op.strip()
    op = op.replace("|", "").lstrip("-")
    m = re.fullmatch(r"([vs])\[(\d+):(\d+)\]", op)
    if m:
        return [(m.group(1), i) for i in range(int(m.group(2)), int(m.group(3)) + 1)]
    m = re.fullmatch(r"([vs])(\d+)", op)
    if m:
        return [(m.group(1), int(m.group(2)))]
    if op in ("vcc", "exec", "m0", "scc"):
        return [("x", op)]
    if op in ("vcc_lo", "vcc_hi"):
        return [("x", "vcc")]
    return []


class Ins:
    __slots__ = ("cls", "w", "r", "name", "slots", "srcc", "ab", "sdata", "dpp", "lds_dma", "sdwa")


class Asm:
    def __init__(self):
        self.lines = []
        self.hist = []
        self.nlabel = 0

    def raw(self, s):
        self.lines.append(s)

    def comment(self, s):
        self.lines.append("    ; " + s)

    def label(self, name):
        self.lines.append(name + ":")

    def newlabel(self, base="L"):
        self.nlabel += 1
        return f"{base}_{self.nlabel}"

    def fence(self, n=0):
        if n:
            self.nop(n)

    def nop(self, n):
        while n > 0:
            k = min(n, 16)
            self.lines.append(f"    s_nop {k - 1}")
            i = Ins()
            i.cls = "nop"; i.w = []; i.r = []; i.name = "s_nop"; i.slots = k
            i.srcc = []; i.ab = []; i.sdata = []; i.dpp = False; i.lds_dma = False; i.sdwa = False
            self.hist.append(i)
            n -= k

    def __call__(self, text):
        text = text.strip()
        name, _, rest = text.partition(" ")
        mods = ""
        ops = []
        depth = 0
        cur = ""
        for ch in rest:
            if ch == "[":
                depth += 1
            if ch == "]":
                depth -= 1
            if ch == "," and depth == 0:
                ops.append(cur.strip()); cur = ""
            else:
                cur += ch
        if cur.strip():
            ops.append(cur.strip())
        if ops:
            last = ops[-1].split()
            ops[-1] = last[0]
            mods = " ".join(last[1:])
        i = Ins()
        i.name = name; i.slots = 1; i.srcc = []; i.ab = []; i.sdata = []
        i.dpp = ("_dpp" in name) or ("row_" in mods) or ("quad_perm" in mods)
        i.lds_dma = False
        i.sdwa = "_sdwa" in name
        R = lambda k: regs_of(ops[k]) if k < len(ops) else []
        allr = lambda ks: [x for k in ks for x in R(k)]
        n = len(ops)
        if name.startswith("v_mfma"):
            i.cls = "mfma"; i.w = R(0); i.ab = R(1) + R(2); i.srcc = R(3); i.r = i.ab + i.srcc
        elif name.startswith("v_cmp"):
            i.cls = "valu"; i.w = R(0); i.r = allr(range(1, n))
        elif name.startswith("v_readfirstlane") or name.startswith("v_readlane"):
            i.cls = "rdlane"; i.w = R(0); i.r = allr(range(1, n))
        elif name.startswith("v_permlane"):
            i.cls = "permlane"; i.w = R(0) + R(1); i.r = R(0) + R(1)
        elif name.startswith("v_"):
            base = name.replace("_e32", "").replace("_e64", "")
            i.cls = "trans" if base in TRANS else "valu"
            i.w = R(0); i.r = allr(range(1, n))
            if name.startswith("v_fmac") or name.startswith("v_pk_fmac") or "UNUSED_PRESERVE" in mods:
                i.r = i.r + R(0)
            if name.startswith("v_add_co") or name.startswith("v_sub_co") or name.startswith("v_addc_co"):
                i.w = R(0) + R(1); i.r = allr(range(2, n))
        elif name.startswith("buffer_load"):
            i.cls = "vmem"
            if "lds" in mods.split():
                i.lds_dma = True; i.w = []; i.r = allr(range(0, n)) + [("x", "m0")]
            else:
                i.w = R(0); i.r = allr(range(1, n))
        elif name.startswith("buffer_store"):
            i.cls = "vmem"; i.w = []; i.r = allr(range(0, n))
            if "x4" in name or "x3" in name:
                i.sdata = R(0)
        elif name.startswith("buffer_") :
            i.cls = "vmem"; i.w = []; i.r = allr(range(0, n))
        elif name.startswith("ds_read") or name.startswith("ds_bpermute") or name.startswith("ds_add_rtn") or name.startswith("ds_swizzle"):
            i.cls = "lds"; i.w = R(0); i.r = allr(range(1, n))
            if "d16" in name:
                i.r = i.r + R(0)
        elif name.startswith("ds_"):
            i.cls = "lds"; i.w = []; i.r = allr(range(0, n))
        elif name.startswith("s_load") or name.startswith("s_buffer_load") or name.startswith("s_mem"):
            i.cls = "smem"; i.w = R(0); i.r = allr(range(1, n))
        elif name.startswith("s_cmp") or name.startswith("s_bitcmp"):
            i.cls = "salu"; i.w = [("x", "scc")]; i.r = allr(range(0, n))
        elif name.startswith("s_") and name not in ("s_waitcnt", "s_barrier", "s_branch", "s_endpgm", "s_sleep", "s_setprio") and not name.startswith("s_cbranch"):
            i.cls = "salu"; i.w = R(0); i.r = allr(range(1, n))
            if "saveexec" in name:
                i.w = i.w + [("x", "exec")]
        else:
            i.cls = "other"; i.w = []; i.r = []
        need = self._need(i)
        if need > 0:
            self.nop(need)
        self.lines.append("    " + text)
        self.hist.append(i)
        if len(self.hist) > 40:
            self.hist = self.hist[-40:]

    def _need(self, c):
        need = 0
        dist = 0
        vis = ("valu", "trans", "rdlane", "permlane")
        cr = set(c.r); cw = set(c.w)
        for p in reversed(self.hist):
            if dist >= 12:
                break
            pw = set(p.w)
            req = 0
            if p.cls in vis:
                pv = {x for x in pw if x[0] == "v"}
                ps = {x for x in pw if x[0] == "s" or x == ("x", "vcc")}
                if c.cls == "mfma" and pv & cr:
                    req = max(req, 2)
                if p.cls == "trans" and c.cls in ("valu", "rdlane", "permlane") and pv & cr:
                    req = max(req, 1)
                if p.sdwa and c.cls in vis and pv & (cr | cw):
                    req = max(req, 1)
                if c.cls == "rdlane" and pv & cr:
                    req = max(req, 1)
                if (c.dpp or c.cls == "permlane") and pv & cr:
                    req = max(req, 2)
                if ps & cr:
                    if c.cls in vis:
                        req = max(req, 4 if c.cls == "rdlane" else 2)
                    elif c.cls == "vmem":
                        req = max(req, 5)
                    elif c.cls in ("salu", "smem"):
                        req = max(req, 2)
                if ("x", "exec") in pw and c.cls == "mfma":
                    req = max(req, 4)
            if p.cls == "mfma":
                if c.cls == "mfma":
                    if pw & set(c.ab):
                        req = max(req, 8)
                    if pw & set(c.srcc) and list(p.w) != list(c.srcc):
                        req = max(req, 6)
                    if pw & cw and list(p.w) != list(c.srcc):
                        req = max(req, 8)
                elif pw & (cr | cw):
                    req = max(req, 8)
                if c.cls in vis and set(p.srcc) & cw:
                    req = max(req, 3)
            if p.cls == "salu" and ("x", "m0") in pw and c.lds_dma:
                req = max(req, 1)
            if p.sdata and set(p.sdata) & cw:
                req = max(req, 2)
            need = max(need, req - dist)
            dist += p.slots
        return need

    def text(self):
        return "\n".join(self.lines) + "\n"
```

```python
import os
from gen import (srd, LdsQ, H_OFF, WD_OFF, XT_OFF, KT_OFF, Y_OFF, ST_OFF, KS_OFF, FL_OFF, WS_SIZE)

TB = 0
UP = 66560
EX = 76800
RED = 93184
CNT = 162816
LDS2 = 162880
YP = 0
VGPR2 = 248
DEPTH = 5

EP = 232


def lds_sync(a, cnt_off, target, vaddr, vtmp, name):
    a("s_waitcnt lgkmcnt(0)")
    a("s_mov_b64 s[60:61], exec")
    a("s_mov_b64 exec, 1")
    a(f"v_mov_b32 v{vtmp}, 1")
    a(f"ds_add_u32 v{vaddr}, v{vtmp} offset:{cnt_off}")
    a("s_mov_b64 exec, s[60:61]")
    lds_wait(a, cnt_off, target, vaddr, vtmp, name)


def lds_wait(a, cnt_off, target, vaddr, vtmp, name, sleep=0):
    a("s_mov_b32 s63, 0")
    a.label(name)
    if sleep:
        a(f"s_sleep {sleep}")
    a(f"ds_read_b32 v{vtmp}, v{vaddr} offset:{cnt_off}")
    a("s_add_u32 s63, s63, 1")
    a("s_waitcnt lgkmcnt(0)")
    a(f"v_readfirstlane_b32 s62, v{vtmp}")
    a("s_lshr_b32 s59, s63, 22")
    a("s_lshl_b32 s59, s59, 8")
    a("s_add_u32 s62, s62, s59")
    a(f"s_cmp_lt_u32 s62, {target}")
    a(f"s_cbranch_scc1 {name}")


def gen_k2(a):
    a.label("k2_kernel")
    a("s_cmp_ge_u32 s2, 256")
    a("s_cbranch_scc1 K2_END")
    a("s_load_dwordx2 s[16:17], s[0:1], 0")
    a("s_load_dwordx2 s[18:19], s[0:1], 48")
    a("s_load_dwordx2 s[20:21], s[0:1], 88")
    a("s_load_dwordx2 s[22:23], s[0:1], 104")
    a("v_lshrrev_b32 v1, 6, v0")
    a("v_and_b32 v2, 63, v0")
    a("v_readfirstlane_b32 s42, v1")
    a("s_and_b32 s3, s2, 1")
    a("s_lshl_b32 s40, s3, 1")
    a("s_bfe_u32 s3, s2, 0x10001")
    a("s_add_u32 s40, s40, s3")
    a("s_lshl_b32 s40, s40, 3")
    a("s_bfe_u32 s3, s2, 0x30003")
    a("s_add_u32 s40, s40, s3")
    a("s_bfe_u32 s41, s2, 0x10002")
    a("s_lshl_b32 s41, s41, 2")
    a("s_lshr_b32 s3, s2, 6")
    a("s_add_u32 s41, s41, s3")
    a("v_and_b32 v3, 15, v2")
    a("v_lshrrev_b32 v4, 4, v2")
    a("v_lshrrev_b32 v5, 3, v0")
    a("v_and_b32 v6, 7, v0")
    a("v_lshlrev_b32 v7, 10, v5")
    a("v_lshl_add_u32 v7, v6, 4, v7")
    a("v_lshlrev_b32 v8, 4, v6")
    a("v_lshlrev_b32 v9, 2, v5")
    a("s_lshl_b32 s44, s40, 16")
    a("s_lshl_b32 s45, s41, 7")
    a("s_add_u32 s44, s44, s45")
    a("s_lshl_b32 s46, s40, 8")
    a(f"s_add_u32 s46, s46, {ST_OFF}")
    a("s_add_u32 s47, s46, 8192")
    a(f"v_mov_b32 v10, {CNT}")
    a("v_mov_b32 v11, 0")
    a("s_waitcnt lgkmcnt(0)")
    srd(a, 4, 16, 2097152)
    srd(a, 8, 18, 1024)
    srd(a, 12, 22, WS_SIZE)
    srd(a, 24, 20, 2097152)
    a("s_cmp_ge_u32 s42, 4")
    a("s_cbranch_scc1 K2_CONV")
    gen_gemm2(a)
    a("s_branch K2_FINAL")
    a.label("K2_CONV")
    gen_conv(a)
    a.label("K2_FINAL")
    gen_final(a)
    a.label("K2_END")
    a("s_endpgm")


def ep_prefetch(a):
    a(f"buffer_load_dwordx4 v[{EP}:{EP+3}], v7, s[4:7], s44 offen")
    a(f"buffer_load_dwordx4 v[{EP+4}:{EP+7}], v8, s[8:11], s45 offen")
    a(f"buffer_load_dword v{EP+8}, v9, s[12:15], s46 offen")
    a(f"buffer_load_dword v{EP+9}, v9, s[12:15], s47 offen")


def gen_gemm2(a):
    BUF = 72
    ACC = 8
    a("v_lshlrev_b32 v1, 4, v2")
    a("s_mul_i32 s3, s42, 11")
    a("s_mul_i32 s48, s40, 43")
    a("s_add_u32 s48, s48, s3")
    a("s_lshl_b32 s48, s48, 12")
    a("s_mul_i32 s49, s41, 43")
    a("s_add_u32 s49, s49, s3")
    a("s_lshl_b32 s49, s49, 12")
    a(f"s_add_u32 s49, s49, {WD_OFF}")

    def load(c):
        b = BUF + (c % DEPTH) * 32
        for k in range(4):
            a(f"buffer_load_dwordx4 v[{b+4*k}:{b+4*k+3}], v1, s[12:15], s49 offen offset:{1024*k}")
            a(f"buffer_load_dwordx4 v[{b+16+4*k}:{b+16+4*k+3}], v1, s[12:15], s48 offen offset:{1024*k}")
        a("s_add_u32 s48, s48, 4096")
        a("s_add_u32 s49, s49, 4096")

    for c in range(DEPTH):
        load(c)
    ep_prefetch(a)
    a("s_barrier")
    for r in range(ACC, ACC + 64):
        a(f"v_mov_b32 v{r}, 0")
    for c in range(11):
        issued_after = 0
        for c2 in range(c + 1, min(c + DEPTH, 11)):
            issued_after += 8
        if c < DEPTH:
            issued_after += 4
        if c == 10:
            a("s_cmp_eq_u32 s42, 3")
            a("s_cbranch_scc1 K2_G2DONE")
        a(f"s_waitcnt vmcnt({issued_after})")
        b = BUF + (c % DEPTH) * 32
        for ai in range(4):
            for bi in range(4):
                d = ACC + (ai * 4 + bi) * 4
                a(f"v_mfma_f32_16x16x32_bf16 v[{d}:{d+3}], v[{b+4*ai}:{b+4*ai+3}], v[{b+16+4*bi}:{b+16+4*bi+3}], v[{d}:{d+3}]")
        if c + DEPTH < 11:
            load(c + DEPTH)
    a.label("K2_G2DONE")
    a("s_mul_i32 s3, s42, 17408")
    a(f"s_add_u32 s3, s3, {RED}")
    a("v_mul_u32_u24 v5, 272, v3")
    a("v_lshl_add_u32 v5, v4, 4, v5")
    a("v_add_u32 v5, s3, v5")
    a.nop(4)
    for ai in range(4):
        for bi in range(4):
            d = ACC + (ai * 4 + bi) * 4
            a(f"ds_write_b128 v5, v[{d}:{d+3}] offset:{bi*16*272 + ai*64}")


def gen_conv(a):
    a("s_sub_u32 s43, s42, 4")
    a("v_subrev_u32 v12, 0x100, v0")
    a("v_lshlrev_b32 v13, 13, v12")
    a("v_lshlrev_b32 v14, 5, v12")
    a("v_lshlrev_b32 v15, 4, v12")
    a("s_lshl_b32 s48, s2, 5")
    a(f"s_add_u32 s48, s48, {XT_OFF}")
    a("s_lshl_b32 s49, s2, 13")
    a(f"s_add_u32 s49, s49, {KT_OFF - 16}")
    a("s_add_u32 s50, s49, 4096")
    a(f"s_mov_b32 s51, {ST_OFF}")
    a(f"s_mov_b32 s52, {ST_OFF + 8192}")
    a("s_lshl_b32 s3, s2, 3")
    a(f"s_add_u32 s3, s3, {KS_OFF}")
    a("s_load_dwordx2 s[54:55], s[22:23], s3")
    KE = 16
    XR = 32
    NM = 40
    RI = 48
    for ch in range(2):
        so = "s49" if ch == 0 else "s50"
        a(f"buffer_load_dwordx4 v[{KE+8*ch}:{KE+8*ch+3}], v15, s[12:15], {so} offen")
        a(f"buffer_load_dwordx4 v[{KE+8*ch+4}:{KE+8*ch+7}], v15, s[12:15], {so} offen offset:16")
    a(f"buffer_load_dwordx4 v[{XR}:{XR+3}], v13, s[12:15], s48 offen")
    a(f"buffer_load_dwordx4 v[{XR+4}:{XR+7}], v13, s[12:15], s48 offen offset:16")
    a(f"buffer_load_dwordx4 v[{NM}:{NM+3}], v14, s[12:15], s51 offen")
    a(f"buffer_load_dwordx4 v[{NM+4}:{NM+7}], v14, s[12:15], s51 offen offset:16")
    a(f"buffer_load_dwordx4 v[{RI}:{RI+3}], v14, s[12:15], s52 offen")
    a(f"buffer_load_dwordx4 v[{RI+4}:{RI+7}], v14, s[12:15], s52 offen offset:16")
    ep_prefetch(a)
    for r in range(56, 60):
        a(f"v_mov_b32 v{r}, 0")
    a("v_lshrrev_b32 v60, 4, v12")
    a("v_mul_u32_u24 v60, 1280, v60")
    a("v_lshl_add_u32 v60, v3, 4, v60")
    a(f"v_add_u32 v60, {UP}, v60")
    a("v_bfe_u32 v61, v12, 5, 1")
    a("v_mul_u32_u24 v61, 33280, v61")
    a("v_and_b32 v62, 31, v12")
    a("v_lshl_add_u32 v61, v62, 4, v61")
    a("v_cmp_gt_u32 vcc, 0x80, v12")
    a("v_cndmask_b32 v60, v61, v60, vcc")
    a("v_cmp_le_u32 vcc, 0xc0, v12")
    a("v_cndmask_b32 v60, v60, v10, vcc")
    a("ds_write_b128 v60, v[56:59]")
    a("v_add_u32 v60, 4, v12")
    a("v_and_b32 v61, 1, v60")
    a("v_bfe_u32 v62, v60, 1, 2")
    a("v_lshl_add_u32 v61, v61, 2, v62")
    a("v_lshlrev_b32 v61, 4, v61")
    a("v_lshl_add_u32 v60, v60, 7, v61")
    a("v_and_b32 v61, 3, v12")
    a("v_mul_u32_u24 v61, 1280, v61")
    a("v_lshrrev_b32 v62, 2, v12")
    a("v_lshl_add_u32 v61, v62, 4, v61")
    a(f"v_add_u32 v61, {UP + 256}, v61")
    a("v_cmp_eq_u32 s[56:57], 0, v12")
    a("s_waitcnt lgkmcnt(0)")
    a("s_barrier")
    O1 = 64
    O2 = 72
    E2 = 80
    for ch in range(2):
        E = KE + 8 * ch
        a(f"s_waitcnt vmcnt({12 - 2*ch})")
        for k in range(4):
            a(f"v_cndmask_b32 v{E+k}, v{E+k}, 0, s[56:57]")
        for j in range(7):
            a(f"v_alignbit_b32 v{O1+j}, v{E+j+1}, v{E+j}, 16")
        for j in range(1, 7):
            a(f"v_alignbit_b32 v{O2+j-1}, v{E+j+1}, v{E+j}, 16")
            a(f"v_mov_b32 v{E2+j-1}, v{E+j}")
        src = {0: O1, 1: E2, 2: O2, 3: E + 2, 4: O1 + 2, 5: E2 + 2, 6: O2 + 2, 7: E + 4}
        for r in range(8):
            a(f"v_xor_b32 v{88+r}, {16*r}, v60")
        for r in range(8):
            a(f"ds_write_b128 v{88+r}, v[{src[r]}:{src[r]+3}] offset:{TB + 33280*ch}")
    a("s_waitcnt vmcnt(4)")
    for ch in range(2):
        X = XR + 4 * ch
        T = 64
        for k in range(4):
            a(f"v_lshlrev_b32 v{T+2*k}, 16, v{X+k}")
            a(f"v_and_b32 v{T+2*k+1}, 0xffff0000, v{X+k}")
        for k in range(4):
            a(f"v_pk_add_f32 v[{T+2*k}:{T+2*k+1}], v[{T+2*k}:{T+2*k+1}], v[{NM+2*k}:{NM+2*k+1}]")
        for k in range(4):
            a(f"v_cvt_pk_bf16_f32 v{X+k}, v{T+2*k}, v{T+2*k+1}")
        for k in range(4):
            a(f"v_lshlrev_b32 v{T+2*k}, 16, v{X+k}")
            a(f"v_and_b32 v{T+2*k+1}, 0xffff0000, v{X+k}")
        for k in range(4):
            a(f"v_pk_mul_f32 v[{T+2*k}:{T+2*k+1}], v[{T+2*k}:{T+2*k+1}], v[{RI+2*k}:{RI+2*k+1}]")
        for k in range(4):
            a(f"v_cvt_pk_bf16_f32 v{X+k}, v{T+2*k}, v{T+2*k+1}")
        for k in range(4):
            a(f"v_lshlrev_b32 v{T+2*k}, 16, v{X+k}")
            a(f"v_and_b32 v{T+2*k+1}, 0xffff0000, v{X+k}")
        for k in range(4):
            a(f"v_cvt_pk_f16_f32 v{X+3-k}, v{T+2*k+1}, v{T+2*k}")
        a(f"ds_write_b128 v61, v[{X}:{X+3}] offset:{5120*ch}")
    a("s_lshr_b32 s48, s43, 1")
    a("s_and_b32 s49, s43, 1")
    a("v_and_b32 v16, 1, v4")
    a("v_lshrrev_b32 v17, 1, v4")
    a("v_lshl_add_u32 v16, v16, 1, v17")
    a("v_lshlrev_b32 v17, 3, v16")
    a("v_sub_u32 v17, v3, v17")
    a("v_add_u32 v17, 32, v17")
    a("v_and_b32 v18, 7, v17")
    a("v_lshrrev_b32 v17, 3, v17")
    a("s_lshl_b32 s3, s49, 2")
    a("v_add_u32 v17, s3, v17")
    a("s_mul_i32 s50, s48, 33280")
    AA = [20, 21]
    for mt in range(2):
        if mt:
            a("v_add_u32 v17, 2, v17")
        a("v_and_b32 v19, 1, v17")
        a("v_bfe_u32 v22, v17, 1, 2")
        a("v_lshl_add_u32 v19, v19, 2, v22")
        a("v_xor_b32 v19, v19, v18")
        a("v_lshlrev_b32 v19, 4, v19")
        a("v_lshl_add_u32 v19, v17, 7, v19")
        a(f"v_add_u32 v{AA[mt]}, s50, v19")
    BA = 22
    a("s_mul_i32 s50, s48, 5120")
    a("s_lshl_b32 s3, s49, 4")
    a("s_sub_u32 s50, s50, s3")
    a(f"s_add_u32 s50, s50, {UP + 256}")
    a("v_mul_u32_u24 v19, 1280, v16")
    a("v_lshl_add_u32 v19, v3, 4, v19")
    a(f"v_add_u32 v{BA}, s50, v19")
    ACC = 24
    for r in range(ACC, ACC + 32):
        a(f"v_mov_b32 v{r}, 0")
    lds_sync(a, 0, 4, 10, 11, "K2_S1")
    FB = [64, 112]

    def reads(buf):
        f = FB[buf]
        for dl in range(4):
            a(f"ds_read_b128 v[{f+4*dl}:{f+4*dl+3}], v{BA} offset:{256*dl}")
        for q in range(4):
            for mt in range(2):
                r = f + 16 + (q * 2 + mt) * 4
                a(f"ds_read_b128 v[{r}:{r+3}], v{AA[mt]} offset:{8192*q}")
        a(f"v_subrev_u32 v{BA}, 32, v{BA}")
        a(f"v_add_u32 v{AA[0]}, 0x400, v{AA[0]}")
        a(f"v_add_u32 v{AA[1]}, 0x400, v{AA[1]}")

    def mfmas(buf):
        f = FB[buf]
        for q in range(4):
            for mt in range(2):
                r = f + 16 + (q * 2 + mt) * 4
                for t in range(q, 4):
                    c = ACC + (t * 2 + mt) * 4
                    b = f + 4 * (t - q)
                    a(f"v_mfma_f32_16x16x32_f16 v[{c}:{c+3}], v[{r}:{r+3}], v[{b}:{b+3}], v[{c}:{c+3}]")

    reads(0)
    a("s_mov_b32 s50, 0")
    a.label("K2_CL")
    a("s_waitcnt lgkmcnt(0)")
    reads(1)
    mfmas(0)
    a("s_waitcnt lgkmcnt(0)")
    reads(0)
    mfmas(1)
    a("s_add_u32 s50, s50, 1")
    a("s_cmp_lt_u32 s50, 4")
    a("s_cbranch_scc1 K2_CL")
    a("s_lshl_b32 s3, s43, 12")
    a(f"s_add_u32 s3, s3, {EX}")
    a("v_lshlrev_b32 v16, 4, v2")
    a("v_add_u32 v17, s3, v16")
    a("s_xor_b32 s3, s3, 4096")
    a("v_add_u32 v18, s3, v16")
    a("s_waitcnt lgkmcnt(0)")
    lab = a.newlabel("K2_X")
    a("s_cmp_eq_u32 s49, 0")
    a(f"s_cbranch_scc1 {lab}")
    for r in range(16):
        a(f"v_swap_b32 v{ACC+r}, v{ACC+16+r}")
    a.label(lab)
    a.nop(2)
    for k in range(4):
        a(f"ds_write_b128 v17, v[{ACC+16+4*k}:{ACC+16+4*k+3}] offset:{1024*k}")
    lds_sync(a, 4, 4, 10, 11, "K2_S2")
    for k in range(4):
        a(f"ds_read_b128 v[{64+4*k}:{64+4*k+3}], v18 offset:{1024*k}")
    a("s_cmp_eq_u32 s48, 0")
    a("s_cselect_b32 s50, s54, s55")
    a("s_lshl_b32 s3, s2, 1")
    a("s_add_u32 s3, s3, s48")
    a("s_lshl_b32 s3, s3, 13")
    a("s_lshl_b32 s51, s49, 12")
    a("s_add_u32 s3, s3, s51")
    a(f"s_add_u32 s3, s3, {Y_OFF}")
    a("v_lshlrev_b32 v19, 7, v3")
    a("v_lshl_add_u32 v19, v4, 4, v19")
    a("s_waitcnt lgkmcnt(0)")
    for r in range(16):
        a(f"v_add_f32 v{ACC+r}, v{ACC+r}, v{64+r}")
    for r in range(16):
        a(f"v_mul_f32 v{ACC+r}, s50, v{ACC+r}")
    for k in range(4):
        t, mt = divmod(k, 2)
        a(f"buffer_store_dwordx4 v[{ACC+4*k}:{ACC+4*k+3}], v19, s[12:15], s3 offen offset:{2048*t + 64*mt} sc1")
    a("v_lshrrev_b32 v16, 4, v12")
    a("v_lshlrev_b32 v16, 13, v16")
    a("v_lshl_add_u32 v16, v3, 4, v16")
    a("s_lshl_b32 s50, s41, 19")
    a("s_lshl_b32 s51, s40, 8")
    a("s_add_u32 s50, s50, s51")
    a(f"s_add_u32 s50, s50, {Y_OFF}")
    a("v_and_b32 v17, 7, v3")
    a("v_xor_b32 v17, s43, v17")
    a("v_lshlrev_b32 v17, 4, v17")
    a("v_lshl_add_u32 v17, v4, 2, v17")
    a("v_mul_u32_u24 v18, 1088, v3")
    a("v_xor_b32 v20, 64, v17")
    a("v_add_u32 v17, v17, v18")
    a("v_add_u32 v18, v20, v18")
    a("s_lshl_b32 s52, s41, 7")
    a(f"s_add_u32 s52, s52, {FL_OFF}")
    a("v_lshlrev_b32 v20, 2, v2")
    a("v_and_b32 v20, 0x7f, v20")
    a("s_waitcnt vmcnt(0)")
    a("v_mov_b32 v11, 1")
    a("s_mov_b64 s[60:61], exec")
    a("s_mov_b64 exec, 1")
    a("ds_add_rtn_u32 v21, v10, v11 offset:8")
    a("s_waitcnt lgkmcnt(0)")
    a("v_readfirstlane_b32 s62, v21")
    a("s_cmp_lg_u32 s62, 3")
    a("s_cbranch_scc1 K2_NOPUB")
    a("s_lshl_b32 s3, s2, 2")
    a(f"s_add_u32 s3, s3, {FL_OFF}")
    a("v_mov_b32 v21, 0")
    a("buffer_store_dword v11, v21, s[12:15], s3 offen sc1")
    a("s_mov_b64 exec, s[60:61]")
    a("s_mov_b32 s53, 0")
    a.label("K2_POLL")
    a("buffer_load_dword v21, v20, s[12:15], s52 offen sc1")
    a("s_add_u32 s53, s53, 1")
    a("s_waitcnt vmcnt(0)")
    a("v_cmp_ne_u32 vcc, 1, v21")
    a("s_cmp_gt_u32 s53, 0x10000")
    a("s_cbranch_scc1 K2_POLLED")
    a("s_cbranch_vccz K2_POLLED")
    a("s_sleep 4")
    a("s_branch K2_POLL")
    a.label("K2_POLLED")
    a("ds_write_b32 v10, v11 offset:12")
    a.label("K2_NOPUB")
    a("s_mov_b64 exec, s[60:61]")
    lds_wait(a, 12, 1, 10, 21, "K2_S3", sleep=2)
    for p4 in range(4):
        if p4:
            a("s_add_u32 s50, s50, 0x20000")
        a(f"buffer_load_dwordx4 v[{64+4*p4}:{64+4*p4+3}], v16, s[12:15], s50 offen sc1")
    for p4 in range(4):
        a(f"s_waitcnt vmcnt({3-p4})")
        for e in range(4):
            a(f"ds_write_b32 v{17 + (p4 & 1)}, v{64+4*p4+e} offset:{YP + 272*e + 128*(p4 >> 1)}")


def gen_final(a):
    a("v_lshrrev_b32 v5, 3, v0")
    a("v_and_b32 v6, 7, v0")
    a("v_lshlrev_b32 v7, 10, v5")
    a("v_lshl_add_u32 v7, v6, 4, v7")
    a("v_mul_u32_u24 v8, 272, v5")
    a("v_lshl_add_u32 v9, v6, 5, v8")
    a(f"v_add_u32 v9, {RED}, v9")
    a("v_bfe_u32 v10, v5, 2, 3")
    a("v_lshlrev_b32 v11, 1, v6")
    a("v_xor_b32 v10, v10, v11")
    a("v_xor_b32 v11, 1, v10")
    a("v_lshl_add_u32 v10, v10, 4, v8")
    a("v_lshl_add_u32 v11, v11, 4, v8")
    a("s_waitcnt vmcnt(0) lgkmcnt(0)")
    a("s_barrier")
    P = 16
    for w in range(4):
        a(f"ds_read_b128 v[{P+8*w}:{P+8*w+3}], v9 offset:{17408*w}")
        a(f"ds_read_b128 v[{P+8*w+4}:{P+8*w+7}], v9 offset:{17408*w+16}")
    Y = 48
    a(f"ds_read_b128 v[{Y}:{Y+3}], v10 offset:{YP}")
    a(f"ds_read_b128 v[{Y+4}:{Y+7}], v11 offset:{YP}")
    X = 56
    N = 64
    D = 72
    Q = 80

    def unpack(dst, src):
        for k in range(4):
            a(f"v_lshlrev_b32 v{dst+2*k}, 16, v{src+k}")
            a(f"v_and_b32 v{dst+2*k+1}, 0xffff0000, v{src+k}")

    def rnd(reg):
        for k in range(4):
            a(f"v_cvt_pk_bf16_f32 v{Q+k}, v{reg+2*k}, v{reg+2*k+1}")
        unpack(reg, Q)

    unpack(X, EP)
    unpack(D, EP + 4)
    for k in range(4):
        a(f"v_pk_add_f32 v[{N+2*k}:{N+2*k+1}], v[{X+2*k}:{X+2*k+1}], v[{EP+8}:{EP+9}] op_sel_hi:[1,0]")
    rnd(N)
    for k in range(4):
        a(f"v_pk_mul_f32 v[{N+2*k}:{N+2*k+1}], v[{N+2*k}:{N+2*k+1}], v[{EP+8}:{EP+9}] op_sel:[0,1] op_sel_hi:[1,1]")
    rnd(N)
    for k in range(4):
        a(f"v_pk_mul_f32 v[{N+2*k}:{N+2*k+1}], v[{N+2*k}:{N+2*k+1}], v[{D+2*k}:{D+2*k+1}]")
    rnd(N)
    a("s_waitcnt lgkmcnt(0)")
    rnd(Y)
    for k in range(4):
        a(f"v_pk_add_f32 v[{P+2*k}:{P+2*k+1}], v[{P+2*k}:{P+2*k+1}], v[{P+8+2*k}:{P+8+2*k+1}]")
        a(f"v_pk_add_f32 v[{P+16+2*k}:{P+16+2*k+1}], v[{P+16+2*k}:{P+16+2*k+1}], v[{P+24+2*k}:{P+24+2*k+1}]")
    for k in range(4):
        a(f"v_pk_add_f32 v[{P+2*k}:{P+2*k+1}], v[{P+2*k}:{P+2*k+1}], v[{P+16+2*k}:{P+16+2*k+1}]")
        a(f"v_pk_add_f32 v[{Y+2*k}:{Y+2*k+1}], v[{Y+2*k}:{Y+2*k+1}], v[{N+2*k}:{N+2*k+1}]")
    rnd(P)
    rnd(Y)
    for k in range(4):
        a(f"v_pk_add_f32 v[{Y+2*k}:{Y+2*k+1}], v[{Y+2*k}:{Y+2*k+1}], v[{X+2*k}:{X+2*k+1}]")
    rnd(Y)
    for k in range(4):
        a(f"v_pk_add_f32 v[{Y+2*k}:{Y+2*k+1}], v[{Y+2*k}:{Y+2*k+1}], v[{P+2*k}:{P+2*k+1}]")
    for k in range(4):
        a(f"v_cvt_pk_bf16_f32 v{Q+k}, v{Y+2*k}, v{Y+2*k+1}")
    a(f"buffer_store_dwordx4 v[{Q}:{Q+3}], v7, s[24:27], s44 offen")
```

```python
import os
import sys
from asmgen import Asm

REF = "parallel_sum__ssm_conv_s4d__glu_gated_reglu__prompt.s.ref"

H_OFF = 0x0
WD_OFF = 0x600000
XT_OFF = 0x800000
KT_OFF = 0xA00000
Y_OFF = 0xC00000
ST_OFF = 0x1000000
KS_OFF = 0x1010000
FL_OFF = 0x1020000
WS_SIZE = 0x1100000

OPT = dict(
    kgen_bar2=int(os.environ.get("KGEN_BAR2", "0")),
    exact=int(os.environ.get("EXACT", "1")),
)


def srd(a, r, base, size):
    a(f"s_mov_b32 s{r}, s{base}")
    a(f"s_and_b32 s{r+1}, s{base+1}, 0xffff")
    a(f"s_mov_b32 s{r+2}, {size}")
    a(f"s_mov_b32 s{r+3}, 0x00020000")


def bf16_round(a, dst, src, tmp):
    a(f"v_cvt_pk_bf16_f32 v{tmp}, v{src}, v{src}")
    a(f"v_lshlrev_b32 v{dst}, 16, v{tmp}")


class LdsQ:
    def __init__(self, a):
        self.a = a
        self.n = 0
        self.done = 0

    def issue(self, text):
        self.a(text)
        self.n += 1
        return self.n

    def wait(self, tag):
        if tag <= self.done:
            return
        out = self.n - tag
        assert out <= 15, out
        self.a(f"s_waitcnt lgkmcnt({out})")
        self.done = tag


XS = 0
WS_ = 49152
SD = 135168
PR = 151552
CS = 156672
LDS1 = 157440


def gen_k1(a):
    a.label("k1_kernel")
    a("s_cmp_ge_u32 s2, 256")
    a("s_cbranch_scc1 K1_END")
    a("s_load_dwordx16 s[16:31], s[0:1], 0")
    a("s_load_dwordx4 s[32:35], s[0:1], 64")
    a("s_load_dwordx2 s[36:37], s[0:1], 80")
    a("s_load_dwordx2 s[38:39], s[0:1], 104")
    a("v_lshrrev_b32 v1, 6, v0")
    a("v_and_b32 v2, 63, v0")
    a("v_readfirstlane_b32 s42, v1")
    a("s_and_b32 s3, s2, 1")
    a("s_lshl_b32 s40, s3, 3")
    a("s_bfe_u32 s3, s2, 0x30003")
    a("s_add_u32 s40, s40, s3")
    a("s_bfe_u32 s41, s2, 0x20001")
    a("s_lshl_b32 s41, s41, 2")
    a("s_lshr_b32 s3, s2, 6")
    a("s_add_u32 s41, s41, s3")
    a("v_and_b32 v3, 15, v2")
    a("v_lshrrev_b32 v4, 4, v2")
    a("s_cmp_ge_u32 s42, 4")
    a("s_cbranch_scc1 K1_SIDE")
    a("s_cmp_ge_u32 s41, 15")
    a("s_cbranch_scc1 K1_END")
    gen_k1_gemm(a)
    a("s_endpgm")
    a.label("K1_SIDE")
    gen_k1_side(a)
    a.label("K1_END")
    a("s_endpgm")


def gen_k1_gemm(a):
    vXo = 8
    vWo = 12
    vXb0, vXb1, vWbe, vWbo = 16, 17, 18, 19
    vXA0, vXA1, vWE0, vWO0, vWE1, vWO1 = 20, 21, 22, 23, 24, 25
    ONES = 28
    XF = 32
    WR = 48
    ACC = 80
    RS = 176
    GR = 184
    CSA = 192
    T0 = 204
    a("s_mul_i32 s43, s41, 3")
    a("s_min_u32 s43, s43, 40")
    a("v_lshrrev_b32 v5, 3, v2")
    a("v_and_b32 v6, 7, v2")
    a("v_xor_b32 v6, v6, v4")
    a("s_lshl_b32 s3, s40, 7")
    a("s_lshl_b32 s55, s42, 5")
    a("s_add_u32 s3, s3, s55")
    a("v_add_u32 v5, s3, v5")
    a("v_lshlrev_b32 v5, 10, v5")
    a(f"v_lshl_add_u32 v{vXo}, v6, 4, v5")
    a("v_xor_b32 v6, 4, v6")
    a(f"v_lshl_add_u32 v{vXo+1}, v6, 4, v5")
    a(f"v_add_u32 v{vXo+1}, {8192-1024}, v{vXo+1}")
    a(f"v_add_u32 v{vXo+2}, {2*(8192-1024)}, v{vXo}")
    a(f"v_add_u32 v{vXo+3}, {2*(8192-1024)}, v{vXo+1}")
    a("s_and_b32 s3, s42, 1")
    a(f"s_mul_i32 s3, s3, {16*2752}")
    a("s_lshl_b32 s55, s43, 6")
    a("s_add_u32 s3, s3, s55")
    a("v_lshrrev_b32 v5, 2, v2")
    a("v_and_b32 v6, 3, v2")
    for i in range(3):
        a(f"v_add_u32 v7, {16*i}, v5")
        a("v_mul_u32_u24 v26, 43, v7")
        a("v_lshrrev_b32 v26, 7, v26")
        a("v_mul_u32_u24 v27, 3, v26")
        a("v_sub_u32 v7, v7, v27")
        a("v_lshrrev_b32 v27, 2, v26")
        a("v_and_b32 v27, 2, v27")
        a("v_xor_b32 v27, v27, v6")
        a("v_mul_u32_u24 v26, 2752, v26")
        a("v_lshl_add_u32 v26, v7, 6, v26")
        a("v_lshl_add_u32 v26, v27, 4, v26")
        a("v_add_u32 v26, s3, v26")
        a(f"v_subrev_u32 v{vWo+i}, {1024*i}, v26")
    a("v_lshrrev_b32 v5, 1, v3")
    a("v_xor_b32 v5, v5, v4")
    a("s_lshl_b32 s53, s42, 12")
    a("v_lshlrev_b32 v6, 7, v3")
    a("v_add_u32 v6, s53, v6")
    a(f"v_lshl_add_u32 v{vXb0}, v5, 4, v6")
    a(f"v_xor_b32 v{vXb1}, 64, v{vXb0}")
    a("v_bfe_u32 v5, v2, 2, 2")
    a("v_lshl_add_u32 v5, v4, 3, v5")
    a("v_mul_u32_u24 v5, 192, v5")
    a("v_and_b32 v6, 1, v2")
    a("v_lshl_add_u32 v5, v6, 3, v5")
    a("v_bfe_u32 v6, v2, 1, 1")
    a("v_and_b32 v7, 1, v4")
    a("v_lshl_add_u32 v6, v7, 1, v6")
    a(f"v_lshl_add_u32 v5, v6, 4, v5")
    a(f"v_add_u32 v{vWbe}, {WS_}, v5")
    a(f"v_xor_b32 v{vWbo}, 32, v{vWbe}")
    a("s_mul_i32 s54, s42, 3072")
    a(f"s_add_u32 s54, s54, {WS_}")
    a("s_waitcnt lgkmcnt(0)")
    srd(a, 4, 16, 2097152)
    a("s_cmp_ge_u32 s42, 2")
    a("s_cselect_b32 s8, s34, s32")
    a("s_cselect_b32 s9, s35, s33")
    a("s_and_b32 s9, s9, 0xffff")
    a("s_mov_b32 s10, 1409024")
    a("s_mov_b32 s11, 0x00020000")
    srd(a, 12, 38, WS_SIZE)

    def dma_x(slot_s, soff_s):
        a(f"s_add_u32 m0, {slot_s}, s53")
        for i in range(4):
            a(f"buffer_load_dwordx4 v{vXo+i}, s[4:7], {soff_s} offen offset:{1024*i} lds")

    def dma_w(slot_s, soff_s):
        a(f"s_add_u32 m0, {slot_s}, s54")
        for i in range(3):
            a(f"buffer_load_dwordx4 v{vWo+i}, s[8:11], {soff_s} offen offset:{1024*i} lds")

    for kind, idx in [("x", 0), ("w", 0), ("w", 1), ("x", 1), ("w", 2), ("w", 3), ("w", 4), ("x", 2), ("w", 5), ("w", 6)]:
        if kind == "x":
            a(f"s_mov_b32 s45, {idx*16384}")
            a(f"s_mov_b32 s51, {idx*128}")
            dma_x("s45", "s51")
        else:
            a(f"s_mov_b32 s46, {idx*12288}")
            a(f"s_mov_b32 s52, {idx*88064}")
            dma_w("s46", "s52")
    for i in range(4):
        a(f"v_mov_b32 v{ONES+i}, 0x3f803f80")
    for r in range(ACC, CSA + 12):
        a(f"v_mov_b32 v{r}, 0")
    a("s_mov_b32 s44, 0")
    a("s_mov_b32 s45, 0")
    a("s_mov_b32 s46, 0")
    a("s_mov_b32 s47, 12288")
    a("s_mov_b32 s51, 384")
    a(f"s_mov_b32 s52, {7*88064}")
    a("s_waitcnt vmcnt(23)")
    a("s_barrier")
    a.label("K1_LOOP")
    a(f"v_add_u32 v{vXA0}, s45, v{vXb0}")
    a(f"v_add_u32 v{vWE0}, s46, v{vWbe}")
    a(f"v_add_u32 v{vWO0}, s46, v{vWbo}")
    a(f"v_add_u32 v{vXA1}, s45, v{vXb1}")
    a(f"v_add_u32 v{vWE1}, s47, v{vWbe}")
    a(f"v_add_u32 v{vWO1}, s47, v{vWbo}")
    q = LdsQ(a)
    LA = 5
    tagX = {}
    tagW = {}

    def rd_x(ks):
        for lam in range(2):
            r = XF + (ks * 2 + lam) * 4
            tagX[(ks, lam)] = q.issue(f"ds_read_b128 v[{r}:{r+3}], v{vXA0 if ks == 0 else vXA1} offset:{lam*2048}")

    def rd_w(t):
        ks, T = divmod(t, 12)
        mat, j6 = divmod(T, 6)
        base = [[vWE0, vWO0], [vWE1, vWO1]][ks][j6 & 1]
        off = mat * 6144 + 64 * (j6 >> 1)
        r = WR + (t % 8) * 4
        q.issue(f"ds_read_b64_tr_b16 v[{r}:{r+1}], v{base} offset:{off}")
        tagW[t] = q.issue(f"ds_read_b64_tr_b16 v[{r+2}:{r+3}], v{base} offset:{off+768}")

    rd_x(0)
    for t in range(LA):
        rd_w(t)
    for t in range(24):
        ks, T = divmod(t, 12)
        if T == 0:
            q.wait(tagX[(ks, 1)])
            for lam in range(2):
                x = XF + (ks * 2 + lam) * 4
                a(f"v_mfma_f32_16x16x32_bf16 v[{RS+4*lam}:{RS+4*lam+3}], v[{ONES}:{ONES+3}], v[{x}:{x+3}], v[{RS+4*lam}:{RS+4*lam+3}]")
                a(f"v_mfma_f32_16x16x32_bf16 v[{GR+4*lam}:{GR+4*lam+3}], v[{x}:{x+3}], v[{x}:{x+3}], v[{GR+4*lam}:{GR+4*lam+3}]")
        if t == 6:
            rd_x(1)
        if t + LA < 24:
            rd_w(t + LA)
        q.wait(tagW[t])
        w = WR + (t % 8) * 4
        for lam in range(2):
            x = XF + (ks * 2 + lam) * 4
            c = ACC + (T * 2 + lam) * 4
            a(f"v_mfma_f32_16x16x32_bf16 v[{c}:{c+3}], v[{w}:{w+3}], v[{x}:{x+3}], v[{c}:{c+3}]")
        if T % 3 == 2:
            lab = a.newlabel("K1_CS")
            a(f"s_cmp_lg_u32 s42, {T//3}")
            a(f"s_cbranch_scc1 {lab}")
            for i in range(3):
                w2 = WR + ((t - 2 + i) % 8) * 4
                a(f"v_mfma_f32_16x16x32_bf16 v[{CSA+4*i}:{CSA+4*i+3}], v[{w2}:{w2+3}], v[{ONES}:{ONES+3}], v[{CSA+4*i}:{CSA+4*i+3}]")
            a.label(lab)
    a("s_waitcnt vmcnt(13)")
    a("s_barrier")
    a("s_cmp_ge_u32 s44, 5")
    a("s_cselect_b32 s3, 0x7f000000, s51")
    dma_x("s45", "s3")
    dma_w("s46", "s52")
    a("s_add_u32 s52, s52, 88064")
    dma_w("s47", "s52")
    a("s_add_u32 s52, s52, 88064")
    a("s_add_u32 s51, s51, 128")
    a("s_add_u32 s45, s45, 16384")
    a("s_cmp_eq_u32 s45, 49152")
    a("s_cselect_b32 s45, 0, s45")
    a("s_add_u32 s46, s47, 12288")
    a(f"s_cmp_eq_u32 s46, {7*12288}")
    a("s_cselect_b32 s46, 0, s46")
    a("s_add_u32 s47, s46, 12288")
    a(f"s_cmp_eq_u32 s47, {7*12288}")
    a("s_cselect_b32 s47, 0, s47")
    a("s_add_u32 s44, s44, 1")
    a("s_cmp_lt_u32 s44, 8")
    a("s_cbranch_scc1 K1_LOOP")

    a("s_mul_i32 s3, s42, 192")
    a(f"s_add_u32 s3, s3, {CS}")
    a("v_lshlrev_b32 v5, 4, v4")
    a("v_add_u32 v6, s3, v5")
    a(f"v_add_u32 v5, {CS}, v5")
    for i in range(3):
        a(f"ds_write_b128 v6, v[{CSA+4*i}:{CSA+4*i+3}] offset:{64*i}")
    a("v_and_b32 v7, 3, v3")
    a("v_lshrrev_b32 v8, 2, v3")
    a("v_lshl_add_u32 v8, v8, 4, v3")
    a("v_lshlrev_b32 v8, 2, v8")
    a("v_cmp_eq_u32 s[56:57], 1, v7")
    a("v_cmp_eq_u32 s[58:59], 2, v7")
    a("v_cmp_eq_u32 s[60:61], 3, v7")
    PM = [10, 12]
    for lam in range(2):
        g = GR + 4 * lam
        a(f"v_cndmask_b32 v9, v{g}, v{g+1}, s[56:57]")
        a(f"v_cndmask_b32 v9, v9, v{g+2}, s[58:59]")
        a(f"v_cndmask_b32 v9, v9, v{g+3}, s[60:61]")
        a(f"ds_bpermute_b32 v{14+lam}, v8, v9")
    a("s_waitcnt lgkmcnt(0)")
    a("s_barrier")
    CSR = 32
    for T in range(12):
        a(f"ds_read_b128 v[{CSR+4*T}:{CSR+4*T+3}], v5 offset:{64*T}")
    for lam in range(2):
        nm, ri = PM[lam], PM[lam] + 1
        a(f"v_mul_f32 v16, 0x3b000000, v{RS+4*lam}")
        a(f"v_mul_f32 v17, 0x3b000000, v{14+lam}")
        a("v_fma_f32 v17, -v16, v16, v17")
        a("v_max_f32 v17, 0, v17")
        bf16_round(a, 16, 16, 18)
        bf16_round(a, 17, 17, 18)
        a("v_add_f32 v17, 0x3727c5ac, v17")
        bf16_round(a, 17, 17, 18)
        a("v_sqrt_f32 v17, v17")
        bf16_round(a, 17, 17, 18)
        a(f"v_rcp_f32 v{ri}, v17")
        a(f"v_sub_f32 v{nm}, 0, v16")
    lab = a.newlabel("K1_NOST")
    a("s_cmp_lg_u32 s41, 0")
    a(f"s_cbranch_scc1 {lab}")
    a("s_lshl_b32 s3, s40, 7")
    a("s_lshl_b32 s55, s42, 5")
    a("s_add_u32 s3, s3, s55")
    a("s_lshl_b32 s3, s3, 2")
    a(f"s_add_u32 s3, s3, {ST_OFF}")
    a("s_add_u32 s55, s3, 8192")
    a("v_lshlrev_b32 v16, 2, v3")
    a("v_cmp_gt_u32 vcc, 16, v2")
    a("s_and_saveexec_b64 s[62:63], vcc")
    for lam in range(2):
        a(f"buffer_store_dword v{PM[lam]}, v16, s[12:15], s3 offen offset:{64*lam}")
        a(f"buffer_store_dword v{PM[lam]+1}, v16, s[12:15], s55 offen offset:{64*lam}")
    a("s_mov_b64 exec, s[62:63]")
    a.label(lab)
    a("s_lshl_b32 s3, s40, 1")
    a("s_lshr_b32 s55, s42, 1")
    a("s_add_u32 s3, s3, s55")
    a("s_mul_i32 s3, s3, 43")
    a("s_add_u32 s3, s3, s43")
    a("s_lshl_b32 s3, s3, 2")
    a("s_and_b32 s55, s42, 1")
    a("s_lshl_b32 s55, s55, 1")
    a("s_add_u32 s3, s3, s55")
    a("s_lshl_b32 s3, s3, 10")
    a("v_lshlrev_b32 v16, 4, v2")
    a("s_waitcnt lgkmcnt(0)")
    for cc in range(3):
        for lam in range(2):
            P = PM[lam]
            Q = T0 + ((cc * 2 + lam) % 2) * 4
            for half in range(2):
                j6 = cc * 2 + half
                G = ACC + (j6 * 2 + lam) * 4
                U = ACC + ((6 + j6) * 2 + lam) * 4
                cg_ = CSR + 4 * j6
                cu_ = CSR + 4 * (6 + j6)
                for (A_, C_) in ((G, cg_), (U, cu_)):
                    for k in (0, 2):
                        a(f"v_pk_fma_f32 v[{A_+k}:{A_+k+1}], v[{C_+k}:{C_+k+1}], v[{P}:{P+1}], v[{A_+k}:{A_+k+1}] op_sel_hi:[1,0,1]")
                if OPT["exact"]:
                    for A_ in (G, U):
                        for k in (0, 2):
                            a(f"v_pk_mul_f32 v[{A_+k}:{A_+k+1}], v[{A_+k}:{A_+k+1}], v[{P}:{P+1}] op_sel:[0,1] op_sel_hi:[1,1]")
                    for A_ in (G, U):
                        a(f"v_cvt_pk_bf16_f32 v{A_}, v{A_}, v{A_+1}")
                        a(f"v_cvt_pk_bf16_f32 v{A_+2}, v{A_+2}, v{A_+3}")
                    a(f"v_pk_max_i16 v{G}, v{G}, 0")
                    a(f"v_pk_max_i16 v{G+2}, v{G+2}, 0")
                    for A_ in (G, U):
                        for k in (0, 2):
                            a(f"v_and_b32 v{A_+k+1}, 0xffff0000, v{A_+k}")
                            a(f"v_lshlrev_b32 v{A_+k}, 16, v{A_+k}")
                    for k in (0, 2):
                        a(f"v_pk_mul_f32 v[{G+k}:{G+k+1}], v[{G+k}:{G+k+1}], v[{U+k}:{U+k+1}]")
                else:
                    for k in range(4):
                        a(f"v_max_f32 v{G+k}, 0, v{G+k}")
                    for k in (0, 2):
                        a(f"v_pk_mul_f32 v[{U+k}:{U+k+1}], v[{U+k}:{U+k+1}], v[{P}:{P+1}] op_sel:[0,1] op_sel_hi:[1,1]")
                    for k in (0, 2):
                        a(f"v_pk_mul_f32 v[{G+k}:{G+k+1}], v[{G+k}:{G+k+1}], v[{P}:{P+1}] op_sel:[0,1] op_sel_hi:[1,1]")
                    for k in (0, 2):
                        a(f"v_pk_mul_f32 v[{G+k}:{G+k+1}], v[{G+k}:{G+k+1}], v[{U+k}:{U+k+1}]")
                a(f"v_cvt_pk_bf16_f32 v{Q+2*half}, v{G}, v{G+1}")
                a(f"v_cvt_pk_bf16_f32 v{Q+2*half+1}, v{G+2}, v{G+3}")
            a(f"buffer_store_dwordx4 v[{Q}:{Q+3}], v16, s[12:15], s3 offen offset:{lam*1024}")
        if cc < 2:
            a("s_add_u32 s3, s3, 4096")


def gen_k1_side(a):
    a("s_sub_u32 s43, s42, 4")
    a("s_lshr_b32 s44, s43, 1")
    a("s_lshl_b32 s45, s2, 1")
    a("s_add_u32 s45, s45, s44")
    a("s_and_b32 s46, s43, 1")
    a("v_lshrrev_b32 v5, 2, v2")
    a("v_and_b32 v6, 3, v2")
    a("v_lshlrev_b32 v7, 10, v5")
    a("v_lshl_add_u32 v7, v6, 4, v7")
    a(f"v_add_u32 v8, {16384-1024}, v7")
    a("s_lshl_b32 s3, s45, 8")
    a("s_lshl_b32 s47, s46, 7")
    a("s_add_u32 s47, s47, s3")
    a("v_lshlrev_b32 v9, 1, v2")
    a("v_lshlrev_b32 v10, 2, v2")
    a("s_lshl_b32 s48, s45, 1")
    a("v_mov_b32 v11, s48")
    a("s_waitcnt lgkmcnt(0)")
    srd(a, 4, 16, 2097152)
    srd(a, 8, 36, 1409024)
    srd(a, 12, 38, WS_SIZE)
    srd(a, 64, 18, 131072)
    srd(a, 68, 20, 131072)
    srd(a, 72, 22, 131072)
    srd(a, 76, 24, 131072)
    srd(a, 80, 26, 1024)
    a("buffer_load_ushort v20, v9, s[64:67], s47 offen")
    a("buffer_load_ushort v21, v9, s[68:71], s47 offen")
    a("buffer_load_ushort v22, v9, s[72:75], s47 offen")
    a("buffer_load_ushort v23, v9, s[76:79], s47 offen")
    a("buffer_load_dword v24, v10, s[72:75], s3 offen")
    a("buffer_load_dword v25, v10, s[76:79], s3 offen")
    a("buffer_load_ushort v26, v11, s[80:83], 0 offen")
    a("s_lshl_b32 s49, s40, 7")
    a("s_lshl_b32 s50, s43, 5")
    a("s_add_u32 s49, s49, s50")
    a("s_lshl_b32 s49, s49, 10")
    a("s_lshl_b32 s50, s41, 6")
    a("s_add_u32 s49, s49, s50")
    a("s_lshl_b32 s51, s43, 11")
    a(f"s_add_u32 s51, s51, {SD}")
    a("s_mov_b32 m0, s51")
    a("buffer_load_dwordx4 v7, s[4:7], s49 offen lds")
    a("buffer_load_dwordx4 v8, s[4:7], s49 offen offset:1024 lds")
    a("s_lshr_b32 s52, s2, 2")
    a("s_and_b32 s53, s2, 3")
    a("s_lshl_b32 s49, s52, 15")
    a("s_lshl_b32 s50, s53, 8")
    a("s_add_u32 s49, s49, s50")
    a("s_lshl_b32 s50, s43, 6")
    a("s_add_u32 s49, s49, s50")
    a("s_add_u32 s50, s51, 8192")
    a("s_mov_b32 m0, s50")
    a("buffer_load_dwordx4 v7, s[8:11], s49 offen lds")
    a("buffer_load_dwordx4 v8, s[8:11], s49 offen offset:1024 lds")
    TA = 28
    a("v_lshrrev_b32 v12, 3, v3")
    a("v_and_b32 v13, 7, v3")
    a("v_lshl_add_u32 v12, v12, 7, v13")
    a(f"v_cvt_f32_u32 v{TA}, v12")
    a("v_lshrrev_b32 v12, 2, v3")
    a("v_and_b32 v13, 3, v3")
    a("v_lshlrev_b32 v12, 7, v12")
    a("v_lshl_add_u32 v12, v13, 1, v12")
    a("v_add_u32 v12, 256, v12")
    a("v_lshrrev_b32 v13, 1, v3")
    a("v_and_b32 v14, 1, v3")
    a("v_lshlrev_b32 v13, 7, v13")
    a("v_lshl_add_u32 v13, v14, 2, v13")
    a("v_cmp_gt_u32 vcc, 8, v3")
    a("v_cndmask_b32 v12, v13, v12, vcc")
    a(f"v_cvt_f32_u32 v{TA+1}, v12")
    a("v_lshlrev_b32 v12, 7, v3")
    a("v_add_u32 v12, 0x400, v12")
    a(f"v_cvt_f32_u32 v{TA+2}, v12")
    a("v_lshlrev_b32 v12, 3, v3")
    a(f"v_cvt_f32_u32 v{TA+3}, v12")
    IDX = 32
    a("v_subrev_u32 v12, 0x100, v0")
    a("v_lshlrev_b32 v12, 3, v12")
    a("s_movk_i32 s3, 0x7fff")
    a("v_mov_b32 v17, 0x20000")
    for e in range(8):
        a(f"v_add_u32 v13, {e}, v12")
        a("v_cvt_f32_u32 v13, v13")
        a("v_bfe_u32 v14, v13, 16, 1")
        a("v_add3_u32 v13, v13, v14, s3")
        a("v_and_b32 v13, 0xffff0000, v13")
        a("v_cvt_u32_f32 v14, v13")
        a("v_lshrrev_b32 v13, 23, v13")
        a("v_subrev_u32 v13, 134, v13")
        a("v_med3_i32 v13, v13, 0, 3")
        a("v_lshrrev_b32 v15, 7, v14")
        a("v_sub_u32 v16, 3, v13")
        a("v_lshlrev_b32 v15, v16, v15")
        a("v_and_b32 v16, 7, v14")
        a("v_lshrrev_b32 v16, v13, v16")
        a("v_lshl_add_u32 v15, v13, 3, v15")
        a("v_add_u32 v15, v15, v16")
        a("v_bfe_u32 v16, v14, 3, 4")
        a("v_lshl_add_u32 v16, v16, 1, v17")
        a(f"v_lshl_add_u32 v{IDX+e}, v15, 5, v16")
    a("s_barrier")
    a("v_bfe_u32 v12, v2, 2, 2")
    a("v_lshl_add_u32 v13, v4, 3, v12")
    a("v_lshlrev_b32 v13, 6, v13")
    a("v_lshl_add_u32 v13, v6, 3, v13")
    a("v_add_u32 v13, s51, v13")
    a("v_lshl_add_u32 v14, v4, 2, v12")
    a("v_lshlrev_b32 v14, 6, v14")
    a("v_lshl_add_u32 v14, v6, 3, v14")
    a("v_add_u32 v14, s50, v14")
    a("s_waitcnt vmcnt(0)")
    for rho in range(2):
        r = 40 + 4 * rho
        a(f"ds_read_b64_tr_b16 v[{r}:{r+1}], v13 offset:{32*rho}")
        a(f"ds_read_b64_tr_b16 v[{r+2}:{r+3}], v13 offset:{32*rho+256}")
    for rho in range(2):
        r = 48 + 4 * rho
        a(f"ds_read_b64_tr_b16 v[{r}:{r+1}], v14 offset:{32*rho}")
        a(f"ds_read_b64_tr_b16 v[{r+2}:{r+3}], v14 offset:{32*rho+1024}")
    a("s_lshl_b32 s3, s40, 4")
    a("s_lshl_b32 s49, s43, 2")
    a("s_add_u32 s3, s3, s49")
    a("s_lshl_b32 s3, s3, 13")
    a("s_lshl_b32 s49, s41, 9")
    a("s_add_u32 s3, s3, s49")
    a(f"s_add_u32 s3, s3, {XT_OFF}")
    a("v_lshlrev_b32 v15, 13, v4")
    a("v_lshl_add_u32 v15, v3, 4, v15")
    a("v_lshlrev_b32 v16, 4, v2")
    a("s_lshl_b32 s49, s53, 1")
    a("s_add_u32 s49, s49, s44")
    a("s_mul_i32 s49, s49, 43")
    a("s_add_u32 s49, s49, s52")
    a("s_lshl_b32 s49, s49, 2")
    a("s_lshl_b32 s56, s46, 1")
    a("s_add_u32 s49, s49, s56")
    a("s_lshl_b32 s49, s49, 10")
    a(f"s_add_u32 s49, s49, {WD_OFF}")
    a("s_waitcnt lgkmcnt(4)")
    a("buffer_store_dwordx4 v[40:43], v15, s[12:15], s3 offen")
    a("buffer_store_dwordx4 v[44:47], v15, s[12:15], s3 offen offset:256")
    a("s_waitcnt lgkmcnt(0)")
    lab = a.newlabel("K1_NOWD")
    a("s_cmp_ge_u32 s2, 172")
    a(f"s_cbranch_scc1 {lab}")
    a("buffer_store_dwordx4 v[48:51], v16, s[12:15], s49 offen")
    a("buffer_store_dwordx4 v[52:55], v16, s[12:15], s49 offen offset:1024")
    a.label(lab)
    for r in (20, 21, 22, 23, 26):
        a(f"v_lshlrev_b32 v{r}, 16, v{r}")
    a("v_mul_f32 v26, 0x3fb8aa3b, v26")
    a("v_mul_f32 v20, 0x3fb8aa3b, v20")
    a("v_exp_f32 v26, v26")
    a("v_exp_f32 v20, v20")
    a("v_lshlrev_b32 v12, 16, v24")
    a("v_and_b32 v13, 0xffff0000, v24")
    a("v_lshlrev_b32 v14, 16, v25")
    a("v_and_b32 v15, 0xffff0000, v25")
    a("v_max3_f32 v12, |v12|, |v13|, |v14|")
    a("v_max_f32 v12, |v15|, v12")
    bf16_round(a, 26, 26, 13)
    bf16_round(a, 20, 20, 13)
    for sh in (8, 4, 2, 1):
        a(f"v_max_f32_dpp v12, v12, v12 row_ror:{sh} row_mask:0xf bank_mask:0xf")
    a("v_readlane_b32 s56, v12, 0")
    a("v_readlane_b32 s57, v12, 16")
    a("v_readlane_b32 s58, v12, 32")
    a("v_readlane_b32 s59, v12, 48")
    a("s_max_u32 s56, s56, s57")
    a("s_max_u32 s58, s58, s59")
    a("s_max_u32 s56, s56, s58")
    a("v_frexp_exp_i32_f32 v12, s56")
    a("v_sub_u32 v13, 0, v12")
    a("v_mul_f32 v20, v20, v26")
    a("v_mul_f32 v20, 0xbfb8aa3b, v20")
    a("v_mul_f32 v21, v21, v26")
    a("s_mov_b32 s56, 0x3e22f983")
    a("s_mov_b32 s57, 0x31dc9c88")
    a("v_mul_f32 v14, s56, v21")
    a("v_fma_f32 v15, v21, s56, -v14")
    a("v_fma_f32 v15, v21, s57, v15")
    a("v_ldexp_f32 v22, v22, v13")
    a("v_ldexp_f32 v23, v23, v13")
    a("v_add_f32 v26, v26, v26")
    a("v_ldexp_f32 v26, v26, v12")
    a("s_mul_i32 s3, s43, 1280")
    a(f"s_add_u32 s3, s3, {PR}")
    a("v_add_u32 v16, s3, v10")
    a("ds_write_b32 v16, v20")
    a("ds_write_b32 v16, v14 offset:256")
    a("ds_write_b32 v16, v15 offset:512")
    a("ds_write_b32 v16, v22 offset:768")
    a("ds_write_b32 v16, v23 offset:1024")
    a("v_lshlrev_b32 v17, 4, v4")
    a("v_add_u32 v17, s3, v17")
    KA = 40
    for r in range(KA, KA + 12):
        a(f"v_mov_b32 v{r}, 0")
    a("s_lshl_b32 s3, s45, 2")
    a(f"s_add_u32 s3, s3, {KS_OFF}")
    a("v_mov_b32 v12, 0")
    a("v_cmp_eq_u32 vcc, 0, v2")
    a("s_and_saveexec_b64 s[54:55], vcc")
    a("buffer_store_dword v26, v12, s[12:15], s3 offen")
    a("s_lshl_b32 s3, s2, 2")
    a(f"s_add_u32 s3, s3, {FL_OFF}")
    a("buffer_store_dword v12, v12, s[12:15], s3 offen")
    a("s_mov_b64 exec, s[54:55]")
    a("s_mov_b32 s47, 0")
    a("s_waitcnt lgkmcnt(0)")
    a("s_barrier")
    PP = 52
    FR = 72
    TM = 88
    a.label("K1_KG")
    for p in range(5):
        a(f"ds_read_b128 v[{PP+4*p}:{PP+4*p+3}], v17 offset:{256*p}")
    a("v_add_u32 v17, 64, v17")
    a("s_waitcnt lgkmcnt(0)")
    for i in range(4):
        ar, th, tl, cr, ci = (PP + 4 * p + i for p in range(5))
        t = lambda tile, k: TM + 6 * tile + k
        for tile in range(4):
            a(f"v_mul_f32 v{t(tile,0)}, v{ar}, v{TA+tile}")
            a(f"v_mul_f32 v{t(tile,1)}, v{th}, v{TA+tile}")
        for tile in range(4):
            a(f"v_exp_f32 v{t(tile,0)}, v{t(tile,0)}")
            a(f"v_fma_f32 v{t(tile,2)}, v{th}, v{TA+tile}, -v{t(tile,1)}")
            a(f"v_fract_f32 v{t(tile,1)}, v{t(tile,1)}")
            a(f"v_fma_f32 v{t(tile,2)}, v{tl}, v{TA+tile}, v{t(tile,2)}")
        for tile in range(4):
            a(f"v_add_f32 v{t(tile,1)}, v{t(tile,1)}, v{t(tile,2)}")
        for tile in range(4):
            a(f"v_sin_f32 v{t(tile,2)}, v{t(tile,1)}")
            a(f"v_cos_f32 v{t(tile,1)}, v{t(tile,1)}")
            if tile < 3:
                a(f"v_mul_f32 v{t(tile,3)}, v{cr}, v{t(tile,0)}")
                a(f"v_mul_f32 v{t(tile,4)}, v{ci}, v{t(tile,0)}")
        for tile in range(3):
            a(f"v_mul_f32 v{t(tile,0)}, v{t(tile,3)}, v{t(tile,1)}")
            a(f"v_mul_f32 v{t(tile,5)}, v{t(tile,3)}, v{t(tile,2)}")
        a(f"v_mul_f32 v{t(3,1)}, v{t(3,0)}, v{t(3,1)}")
        a(f"v_mul_f32 v{t(3,2)}, v{t(3,0)}, v{t(3,2)}")
        for tile in range(3):
            a(f"v_fma_f32 v{t(tile,0)}, -v{t(tile,4)}, v{t(tile,2)}, v{t(tile,0)}")
            a(f"v_fma_f32 v{t(tile,5)}, -v{t(tile,4)}, v{t(tile,1)}, -v{t(tile,5)}")
        a(f"v_cvt_pk_f16_f32 v{FR+12+i}, v{t(3,1)}, v{t(3,2)}")
        for tile in range(3):
            a(f"v_cvt_pk_f16_f32 v{FR+4*tile+i}, v{t(tile,0)}, v{t(tile,5)}")
        if i == 1 and OPT["kgen_bar2"]:
            a("s_barrier")
    for tile in range(3):
        a(f"v_mfma_f32_16x16x32_f16 v[{KA+4*tile}:{KA+4*tile+3}], v[{FR+4*tile}:{FR+4*tile+3}], v[{FR+12}:{FR+15}], v[{KA+4*tile}:{KA+4*tile+3}]")
    a("s_barrier")
    a("s_add_u32 s47, s47, 1")
    a("s_cmp_lt_u32 s47, 4")
    a("s_cbranch_scc1 K1_KG")
    a("s_mul_i32 s3, s44, 3072")
    a(f"s_add_u32 s3, s3, {SD}")
    a("v_lshlrev_b32 v16, 4, v2")
    a("v_add_u32 v17, s3, v16")
    a("s_mul_i32 s3, s44, 1536")
    a(f"s_add_u32 s3, s3, {SD+8192}")
    a("v_lshlrev_b32 v18, 7, v4")
    a("v_lshl_add_u32 v18, v3, 1, v18")
    a("v_add_u32 v18, s3, v18")
    a.nop(4)
    lab = a.newlabel("K1_R1")
    a("s_cmp_eq_u32 s46, 0")
    a(f"s_cbranch_scc1 {lab}")
    for tile in range(3):
        a(f"ds_write_b128 v17, v[{KA+4*tile}:{KA+4*tile+3}] offset:{1024*tile}")
    a("s_waitcnt lgkmcnt(0)")
    a.label(lab)
    a("s_barrier")
    lab = a.newlabel("K1_R2")
    a("s_cmp_lg_u32 s46, 0")
    a(f"s_cbranch_scc1 {lab}")
    for tile in range(3):
        a(f"ds_read_b128 v[{PP+4*tile}:{PP+4*tile+3}], v17 offset:{1024*tile}")
    a("s_waitcnt lgkmcnt(0)")
    for r in range(12):
        a(f"v_add_f32 v{KA+r}, v{KA+r}, v{PP+r}")
    for r in range(0, 12, 2):
        a(f"v_cvt_pk_f16_f32 v{KA+r}, v{KA+r}, v{KA+r+1}")
    for tile in range(3):
        for i in range(4):
            op = "ds_write_b16" if i % 2 == 0 else "ds_write_b16_d16_hi"
            a(f"{op} v18, v{KA+4*tile+(i//2)*2} offset:{512*tile+32*i}")
    a("s_waitcnt lgkmcnt(0)")
    a.label(lab)
    a("s_barrier")
    a("v_subrev_u32 v12, 0x100, v0")
    a("v_lshlrev_b32 v12, 4, v12")
    a("s_lshl_b32 s3, s2, 13")
    a(f"s_add_u32 s3, s3, {KT_OFF}")
    a("s_add_u32 s47, s3, 4096")
    for ch in range(2):
        for e in range(8):
            op = "ds_read_u16" if e % 2 == 0 else "ds_read_u16_d16_hi"
            if ch == 1 and e == 7:
                a("s_waitcnt lgkmcnt(8)")
            a(f"{op} v{52+8*ch+4*(e%2)+e//2}, v{IDX+e} offset:{SD+8192+1536*ch - 131072}")
    for ch in range(2):
        a(f"s_waitcnt lgkmcnt({8*(1-ch)})")
        for k in range(4):
            a(f"v_or_b32 v{52+8*ch+k}, v{52+8*ch+k}, v{56+8*ch+k}")
        a(f"buffer_store_dwordx4 v[{52+8*ch}:{55+8*ch}], v12, s[12:15], {'s3' if ch == 0 else 's47'} offen")


KD = """.section .rodata,"a"
.p2align 6
.amdhsa_kernel {name}
  .amdhsa_next_free_vgpr {vgpr}
  .amdhsa_next_free_sgpr 96
  .amdhsa_accum_offset {vgpr}
  .amdhsa_group_segment_fixed_size 0
  .amdhsa_kernarg_size 112
  .amdhsa_user_sgpr_count 2
  .amdhsa_user_sgpr_kernarg_segment_ptr 1
  .amdhsa_system_sgpr_workgroup_id_x 1
.end_amdhsa_kernel
"""


def main():
    out = sys.argv[1]
    which = sys.argv[2] if len(sys.argv) > 2 else "12"
    hdr = open(REF).read().split("; Override launch geometry")[0]
    s = hdr
    if "1" in which:
        s += f"; @launch kernel=k1_kernel grid=(256,1,1) block=(512,1,1) lds={LDS1}\n"
    if "2" in which:
        from gen2 import LDS2
        s += f"; @launch kernel=k2_kernel grid=(256,1,1) block=(512,1,1) lds={LDS2}\n"
    s += '.amdgcn_target "amdgcn-amd-amdhsa--gfx950"\n.text\n'
    kds = ""
    if "1" in which:
        a = Asm()
        gen_k1(a)
        s += ".globl k1_kernel\n.p2align 8\n.type k1_kernel,@function\n" + a.text()
        kds += KD.format(name="k1_kernel", vgpr=216)
    if "2" in which:
        from gen2 import gen_k2, VGPR2
        a = Asm()
        gen_k2(a)
        s += ".globl k2_kernel\n.p2align 8\n.type k2_kernel,@function\n" + a.text()
        kds += KD.format(name="k2_kernel", vgpr=VGPR2)
    s += kds
    open(out, "w").write(s)


if __name__ == "__main__":
    main()
```

```python
import os
from gen import (OPT, stamp, stamp_flush, srd, LdsQ, H_OFF, WD_OFF, XT_OFF, KT_OFF, Y_OFF, ST_OFF, KS_OFF, FL_OFF, WS_SIZE)

TB = 0
UP = 66560
EX = 76800
RED = 93184
CNT = 162816
LDS2 = 162880
YP = 0
VGPR2 = 248
DEPTH = 5

EP = 232


def lds_sync(a, cnt_off, target, vaddr, vtmp, name):
    a("s_waitcnt lgkmcnt(0)")
    a("s_mov_b64 s[60:61], exec")
    a("s_mov_b64 exec, 1")
    a(f"v_mov_b32 v{vtmp}, 1")
    a(f"ds_add_u32 v{vaddr}, v{vtmp} offset:{cnt_off}")
    a("s_mov_b64 exec, s[60:61]")
    lds_wait(a, cnt_off, target, vaddr, vtmp, name)


def lds_wait(a, cnt_off, target, vaddr, vtmp, name, sleep=0):
    a("s_mov_b32 s63, 0")
    a.label(name)
    if sleep:
        a(f"s_sleep {sleep}")
    a(f"ds_read_b32 v{vtmp}, v{vaddr} offset:{cnt_off}")
    a("s_add_u32 s63, s63, 1")
    a("s_waitcnt lgkmcnt(0)")
    a(f"v_readfirstlane_b32 s62, v{vtmp}")
    a("s_lshr_b32 s59, s63, 22")
    a("s_lshl_b32 s59, s59, 8")
    a("s_add_u32 s62, s62, s59")
    a(f"s_cmp_lt_u32 s62, {target}")
    a(f"s_cbranch_scc1 {name}")


def gen_k2(a):
    a.label("k2_kernel")
    a("s_cmp_ge_u32 s2, 256")
    a("s_cbranch_scc1 K2_END")
    stamp(a, 0)
    a("s_load_dwordx2 s[16:17], s[0:1], 0")
    a("s_load_dwordx2 s[18:19], s[0:1], 48")
    a("s_load_dwordx2 s[20:21], s[0:1], 88")
    a("s_load_dwordx2 s[22:23], s[0:1], 104")
    a("v_lshrrev_b32 v1, 6, v0")
    a("v_and_b32 v2, 63, v0")
    a("v_readfirstlane_b32 s42, v1")
    a("s_and_b32 s3, s2, 1")
    a("s_lshl_b32 s40, s3, 1")
    a("s_bfe_u32 s3, s2, 0x10001")
    a("s_add_u32 s40, s40, s3")
    a("s_lshl_b32 s40, s40, 3")
    a("s_bfe_u32 s3, s2, 0x30003")
    a("s_add_u32 s40, s40, s3")
    a("s_bfe_u32 s41, s2, 0x10002")
    a("s_lshl_b32 s41, s41, 2")
    a("s_lshr_b32 s3, s2, 6")
    a("s_add_u32 s41, s41, s3")
    a("v_and_b32 v3, 15, v2")
    a("v_lshrrev_b32 v4, 4, v2")
    a("v_lshrrev_b32 v5, 3, v0")
    a("v_and_b32 v6, 7, v0")
    a("v_lshlrev_b32 v7, 10, v5")
    a("v_lshl_add_u32 v7, v6, 4, v7")
    a("v_lshlrev_b32 v8, 4, v6")
    a("v_lshlrev_b32 v9, 2, v5")
    a("s_lshl_b32 s44, s40, 16")
    a("s_lshl_b32 s45, s41, 7")
    a("s_add_u32 s44, s44, s45")
    a("s_lshl_b32 s46, s40, 8")
    a(f"s_add_u32 s46, s46, {ST_OFF}")
    a("s_add_u32 s47, s46, 8192")
    a(f"v_mov_b32 v10, {CNT}")
    a("v_mov_b32 v11, 0")
    a("s_waitcnt lgkmcnt(0)")
    srd(a, 4, 16, 2097152)
    srd(a, 8, 18, 1024)
    srd(a, 12, 22, WS_SIZE)
    srd(a, 24, 20, 2097152)
    a("s_cmp_ge_u32 s42, 4")
    a("s_cbranch_scc1 K2_CONV")
    gen_gemm2(a)
    a("s_branch K2_FINAL")
    a.label("K2_CONV")
    gen_conv(a)
    a.label("K2_FINAL")
    gen_final(a)
    stamp(a, 10)
    stamp_flush(a, 1)
    a.label("K2_END")
    a("s_endpgm")


def ep_prefetch(a):
    a(f"buffer_load_dwordx4 v[{EP}:{EP+3}], v7, s[4:7], s44 offen")
    a(f"buffer_load_dwordx4 v[{EP+4}:{EP+7}], v8, s[8:11], s45 offen")
    a(f"buffer_load_dword v{EP+8}, v9, s[12:15], s46 offen")
    a(f"buffer_load_dword v{EP+9}, v9, s[12:15], s47 offen")


def gen_gemm2(a):
    BUF = 72
    ACC = 8
    a("v_lshlrev_b32 v1, 4, v2")
    a("s_mul_i32 s3, s42, 11")
    a("s_mul_i32 s48, s40, 43")
    a("s_add_u32 s48, s48, s3")
    a("s_lshl_b32 s48, s48, 12")
    a("s_mul_i32 s49, s41, 43")
    a("s_add_u32 s49, s49, s3")
    a("s_lshl_b32 s49, s49, 12")
    a(f"s_add_u32 s49, s49, {WD_OFF}")

    a("s_cmp_eq_u32 s42, 3")
    a("s_cselect_b32 s57, 10, 11")
    if OPT["rot"]:
        a("s_bfe_u32 s56, s2, 0x30003")
        a("s_lshl_b32 s56, s56, 2")
        a("s_lshr_b32 s3, s2, 6")
        a("s_mul_i32 s3, s3, 3")
        a("s_add_u32 s56, s56, s3")
        for _ in range(3):
            a("s_cmp_ge_u32 s56, s57")
            a("s_cselect_b32 s3, s57, 0")
            a("s_sub_u32 s56, s56, s3")
    else:
        a("s_mov_b32 s56, 0")
    a("s_lshl_b32 s56, s56, 12")
    a("s_lshl_b32 s57, s57, 12")

    def load(c):
        b = BUF + (c % DEPTH) * 32
        a("s_add_u32 s50, s48, s56")
        a("s_add_u32 s51, s49, s56")
        for k in range(4):
            a(f"buffer_load_dwordx4 v[{b+4*k}:{b+4*k+3}], v1, s[12:15], s51 offen offset:{1024*k}")
            a(f"buffer_load_dwordx4 v[{b+16+4*k}:{b+16+4*k+3}], v1, s[12:15], s50 offen offset:{1024*k}")
        a("s_add_u32 s56, s56, 4096")
        a("s_cmp_eq_u32 s56, s57")
        a("s_cselect_b32 s56, 0, s56")

    a("s_barrier")
    if os.environ.get("DBG_NOG2"):
        ep_prefetch(a)
        a("s_branch K2_G2DONE")
    NP = int(os.environ.get("G2PACE", "1"))
    for c in range(DEPTH):
        if c == NP:
            a(f"s_waitcnt vmcnt({8*(NP-1)})")
        load(c)
    ep_prefetch(a)
    stamp(a, 1)
    for r in range(ACC, ACC + 64):
        a(f"v_mov_b32 v{r}, 0")
    for c in range(11):
        issued_after = 0
        for c2 in range(c + 1, min(c + DEPTH, 11)):
            issued_after += 8
        if c < DEPTH:
            issued_after += 4
        if c == 10:
            a("s_cmp_eq_u32 s42, 3")
            a("s_cbranch_scc1 K2_G2DONE")
        a(f"s_waitcnt vmcnt({issued_after})")
        if c in (0, 5):
            stamp(a, 2 if c == 0 else 4)
        b = BUF + (c % DEPTH) * 32
        for ai in range(4):
            for bi in range(4):
                d = ACC + (ai * 4 + bi) * 4
                a(f"v_mfma_f32_16x16x32_bf16 v[{d}:{d+3}], v[{b+4*ai}:{b+4*ai+3}], v[{b+16+4*bi}:{b+16+4*bi+3}], v[{d}:{d+3}]")
        if c + DEPTH < 11:
            load(c + DEPTH)
    a.label("K2_G2DONE")
    stamp(a, 3)
    a("s_mul_i32 s3, s42, 17408")
    a(f"s_add_u32 s3, s3, {RED}")
    a("v_mul_u32_u24 v5, 272, v3")
    a("v_lshl_add_u32 v5, v4, 4, v5")
    a("v_add_u32 v5, s3, v5")
    a.nop(4)
    for ai in range(4):
        for bi in range(4):
            d = ACC + (ai * 4 + bi) * 4
            a(f"ds_write_b128 v5, v[{d}:{d+3}] offset:{bi*16*272 + ai*64}")


def gen_conv(a):
    a("s_sub_u32 s43, s42, 4")
    if OPT["prio"]:
        a("s_setprio 3")
    a("v_subrev_u32 v12, 0x100, v0")
    a("v_lshlrev_b32 v13, 13, v12")
    a("v_lshlrev_b32 v14, 5, v12")
    a("v_lshlrev_b32 v15, 4, v12")
    a("s_lshl_b32 s48, s2, 5")
    a(f"s_add_u32 s48, s48, {XT_OFF}")
    a("s_lshl_b32 s49, s2, 13")
    a(f"s_add_u32 s49, s49, {KT_OFF - 16}")
    a("s_add_u32 s50, s49, 4096")
    a(f"s_mov_b32 s51, {ST_OFF}")
    a(f"s_mov_b32 s52, {ST_OFF + 8192}")
    a("s_lshl_b32 s3, s2, 3")
    a(f"s_add_u32 s3, s3, {KS_OFF}")
    a("s_mov_b32 s58, s3")
    KE = 16
    XR = 32
    NM = 40
    RI = 48
    for ch in range(2):
        so = "s49" if ch == 0 else "s50"
        a(f"buffer_load_dwordx4 v[{KE+8*ch}:{KE+8*ch+3}], v15, s[12:15], {so} offen")
        a(f"buffer_load_dwordx4 v[{KE+8*ch+4}:{KE+8*ch+7}], v15, s[12:15], {so} offen offset:16")
    a(f"buffer_load_dwordx4 v[{XR}:{XR+3}], v13, s[12:15], s48 offen")
    a(f"buffer_load_dwordx4 v[{XR+4}:{XR+7}], v13, s[12:15], s48 offen offset:16")
    a(f"buffer_load_dwordx4 v[{NM}:{NM+3}], v14, s[12:15], s51 offen")
    a(f"buffer_load_dwordx4 v[{NM+4}:{NM+7}], v14, s[12:15], s51 offen offset:16")
    a(f"buffer_load_dwordx4 v[{RI}:{RI+3}], v14, s[12:15], s52 offen")
    a(f"buffer_load_dwordx4 v[{RI+4}:{RI+7}], v14, s[12:15], s52 offen offset:16")
    ep_prefetch(a)
    for r in range(56, 60):
        a(f"v_mov_b32 v{r}, 0")
    a("v_lshrrev_b32 v60, 4, v12")
    a("v_mul_u32_u24 v60, 1280, v60")
    a("v_lshl_add_u32 v60, v3, 4, v60")
    a(f"v_add_u32 v60, {UP}, v60")
    a("v_bfe_u32 v61, v12, 5, 1")
    a("v_mul_u32_u24 v61, 33280, v61")
    a("v_and_b32 v62, 31, v12")
    a("v_lshl_add_u32 v61, v62, 4, v61")
    a("v_cmp_gt_u32 vcc, 0x80, v12")
    a("v_cndmask_b32 v60, v61, v60, vcc")
    a("v_cmp_le_u32 vcc, 0xc0, v12")
    a("v_cndmask_b32 v60, v60, v10, vcc")
    a("ds_write_b128 v60, v[56:59]")
    a("s_waitcnt lgkmcnt(0)")
    a("s_barrier")
    stamp(a, 1)
    a("v_add_u32 v60, 4, v12")
    a("v_and_b32 v61, 1, v60")
    a("v_bfe_u32 v62, v60, 1, 2")
    a("v_lshl_add_u32 v61, v61, 2, v62")
    a("v_lshlrev_b32 v61, 4, v61")
    a("v_lshl_add_u32 v60, v60, 7, v61")
    a("v_and_b32 v61, 3, v12")
    a("v_mul_u32_u24 v61, 1280, v61")
    a("v_lshrrev_b32 v62, 2, v12")
    a("v_lshl_add_u32 v61, v62, 4, v61")
    a(f"v_add_u32 v61, {UP + 256}, v61")
    a("v_cmp_eq_u32 s[56:57], 0, v12")
    O1 = 64
    O2 = 72
    E2 = 80
    for ch in range(2):
        E = KE + 8 * ch
        a(f"s_waitcnt vmcnt({12 - 2*ch})")
        if ch == 0:
            stamp(a, 2)
        for k in range(4):
            a(f"v_cndmask_b32 v{E+k}, v{E+k}, 0, s[56:57]")
        for j in range(7):
            a(f"v_alignbit_b32 v{O1+j}, v{E+j+1}, v{E+j}, 16")
        for j in range(1, 7):
            a(f"v_alignbit_b32 v{O2+j-1}, v{E+j+1}, v{E+j}, 16")
            a(f"v_mov_b32 v{E2+j-1}, v{E+j}")
        src = {0: O1, 1: E2, 2: O2, 3: E + 2, 4: O1 + 2, 5: E2 + 2, 6: O2 + 2, 7: E + 4}
        for r in range(8):
            a(f"v_xor_b32 v{88+r}, {16*r}, v60")
        for r in range(8):
            a(f"ds_write_b128 v{88+r}, v[{src[r]}:{src[r]+3}] offset:{TB + 33280*ch}")
    a("s_waitcnt vmcnt(4)")
    for ch in range(2):
        X = XR + 4 * ch
        T = 64
        for k in range(4):
            a(f"v_lshlrev_b32 v{T+2*k}, 16, v{X+k}")
            a(f"v_and_b32 v{T+2*k+1}, 0xffff0000, v{X+k}")
        for k in range(4):
            a(f"v_pk_add_f32 v[{T+2*k}:{T+2*k+1}], v[{T+2*k}:{T+2*k+1}], v[{NM+2*k}:{NM+2*k+1}]")
        for k in range(4):
            a(f"v_cvt_pk_bf16_f32 v{X+k}, v{T+2*k}, v{T+2*k+1}")
        for k in range(4):
            a(f"v_lshlrev_b32 v{T+2*k}, 16, v{X+k}")
            a(f"v_and_b32 v{T+2*k+1}, 0xffff0000, v{X+k}")
        for k in range(4):
            a(f"v_pk_mul_f32 v[{T+2*k}:{T+2*k+1}], v[{T+2*k}:{T+2*k+1}], v[{RI+2*k}:{RI+2*k+1}]")
        for k in range(4):
            a(f"v_cvt_pk_bf16_f32 v{X+k}, v{T+2*k}, v{T+2*k+1}")
        for k in range(4):
            a(f"v_lshlrev_b32 v{T+2*k}, 16, v{X+k}")
            a(f"v_and_b32 v{T+2*k+1}, 0xffff0000, v{X+k}")
        for k in range(4):
            a(f"v_cvt_pk_f16_f32 v{X+3-k}, v{T+2*k+1}, v{T+2*k}")
        a(f"ds_write_b128 v61, v[{X}:{X+3}] offset:{5120*ch}")
    a("s_load_dwordx2 s[54:55], s[22:23], s58")
    a("s_lshr_b32 s48, s43, 1")
    a("s_and_b32 s49, s43, 1")
    a("v_and_b32 v16, 1, v4")
    a("v_lshrrev_b32 v17, 1, v4")
    a("v_lshl_add_u32 v16, v16, 1, v17")
    a("v_lshlrev_b32 v17, 3, v16")
    a("v_sub_u32 v17, v3, v17")
    a("v_add_u32 v17, 32, v17")
    a("v_and_b32 v18, 7, v17")
    a("v_lshrrev_b32 v17, 3, v17")
    a("s_lshl_b32 s3, s49, 2")
    a("v_add_u32 v17, s3, v17")
    a("s_mul_i32 s50, s48, 33280")
    AA = [20, 21]
    for mt in range(2):
        if mt:
            a("v_add_u32 v17, 2, v17")
        a("v_and_b32 v19, 1, v17")
        a("v_bfe_u32 v22, v17, 1, 2")
        a("v_lshl_add_u32 v19, v19, 2, v22")
        a("v_xor_b32 v19, v19, v18")
        a("v_lshlrev_b32 v19, 4, v19")
        a("v_lshl_add_u32 v19, v17, 7, v19")
        a(f"v_add_u32 v{AA[mt]}, s50, v19")
    BA = 22
    a("s_mul_i32 s50, s48, 5120")
    a("s_lshl_b32 s3, s49, 4")
    a("s_sub_u32 s50, s50, s3")
    a(f"s_add_u32 s50, s50, {UP + 256}")
    a("v_mul_u32_u24 v19, 1280, v16")
    a("v_lshl_add_u32 v19, v3, 4, v19")
    a(f"v_add_u32 v{BA}, s50, v19")
    ACC = 24
    for r in range(ACC, ACC + 32):
        a(f"v_mov_b32 v{r}, 0")
    lds_sync(a, 0, 4, 10, 11, "K2_S1")
    stamp(a, 3)
    FB = [64, 112]

    def reads(buf):
        f = FB[buf]
        if os.environ.get("DBG_NOREAD"):
            return
        for dl in range(4):
            a(f"ds_read_b128 v[{f+4*dl}:{f+4*dl+3}], v{BA} offset:{256*dl}")
        for q in range(4):
            for mt in range(2):
                r = f + 16 + (q * 2 + mt) * 4
                a(f"ds_read_b128 v[{r}:{r+3}], v{AA[mt]} offset:{8192*q}")
        a(f"v_subrev_u32 v{BA}, 32, v{BA}")
        a(f"v_add_u32 v{AA[0]}, 0x400, v{AA[0]}")
        a(f"v_add_u32 v{AA[1]}, 0x400, v{AA[1]}")

    def mfmas(buf):
        f = FB[buf]
        if os.environ.get("DBG_NOMFMA"):
            return
        for q in range(4):
            for mt in range(2):
                r = f + 16 + (q * 2 + mt) * 4
                for t in range(q, 4):
                    c = ACC + (t * 2 + mt) * 4
                    b = f + 4 * (t - q)
                    a(f"v_mfma_f32_16x16x32_f16 v[{c}:{c+3}], v[{r}:{r+3}], v[{b}:{b+3}], v[{c}:{c+3}]")

    reads(0)
    a("s_mov_b32 s50, 0")
    a.label("K2_CL")
    a("s_waitcnt lgkmcnt(0)")
    reads(1)
    mfmas(0)
    a("s_waitcnt lgkmcnt(0)")
    reads(0)
    mfmas(1)
    a("s_add_u32 s50, s50, 1")
    a("s_cmp_lt_u32 s50, 4")
    a("s_cbranch_scc1 K2_CL")
    stamp(a, 4)
    a("s_lshl_b32 s3, s43, 12")
    a(f"s_add_u32 s3, s3, {EX}")
    a("v_lshlrev_b32 v16, 4, v2")
    a("v_add_u32 v17, s3, v16")
    a("s_xor_b32 s3, s3, 4096")
    a("v_add_u32 v18, s3, v16")
    a("s_waitcnt lgkmcnt(0)")
    lab = a.newlabel("K2_X")
    a("s_cmp_eq_u32 s49, 0")
    a(f"s_cbranch_scc1 {lab}")
    for r in range(16):
        a(f"v_swap_b32 v{ACC+r}, v{ACC+16+r}")
    a.label(lab)
    a.nop(2)
    for k in range(4):
        a(f"ds_write_b128 v17, v[{ACC+16+4*k}:{ACC+16+4*k+3}] offset:{1024*k}")
    lds_sync(a, 4, 4, 10, 11, "K2_S2")
    stamp(a, 5)
    for k in range(4):
        a(f"ds_read_b128 v[{64+4*k}:{64+4*k+3}], v18 offset:{1024*k}")
    a("s_cmp_eq_u32 s48, 0")
    a("s_cselect_b32 s50, s54, s55")
    a("s_lshl_b32 s3, s2, 1")
    a("s_add_u32 s3, s3, s48")
    a("s_lshl_b32 s3, s3, 13")
    a("s_lshl_b32 s51, s49, 12")
    a("s_add_u32 s3, s3, s51")
    a(f"s_add_u32 s3, s3, {Y_OFF}")
    a("v_lshlrev_b32 v19, 7, v3")
    a("v_lshl_add_u32 v19, v4, 4, v19")
    a("s_waitcnt lgkmcnt(0)")
    for r in range(16):
        a(f"v_add_f32 v{ACC+r}, v{ACC+r}, v{64+r}")
    for r in range(16):
        a(f"v_mul_f32 v{ACC+r}, s50, v{ACC+r}")
    for k in range(4):
        t, mt = divmod(k, 2)
        a(f"buffer_store_dwordx4 v[{ACC+4*k}:{ACC+4*k+3}], v19, s[12:15], s3 offen offset:{2048*t + 64*mt} sc1")
    a("v_lshrrev_b32 v16, 4, v12")
    a("v_lshlrev_b32 v16, 13, v16")
    a("v_lshl_add_u32 v16, v3, 4, v16")
    a("s_lshl_b32 s50, s41, 19")
    a("s_lshl_b32 s51, s40, 8")
    a("s_add_u32 s50, s50, s51")
    a(f"s_add_u32 s50, s50, {Y_OFF}")
    a("v_and_b32 v17, 7, v3")
    a("v_xor_b32 v17, s43, v17")
    a("v_lshlrev_b32 v17, 4, v17")
    a("v_lshl_add_u32 v17, v4, 2, v17")
    a("v_mul_u32_u24 v18, 1088, v3")
    a("v_xor_b32 v20, 64, v17")
    a("v_add_u32 v17, v17, v18")
    a("v_add_u32 v18, v20, v18")
    a("s_lshl_b32 s52, s41, 7")
    a(f"s_add_u32 s52, s52, {FL_OFF}")
    a("v_lshlrev_b32 v20, 2, v2")
    a("v_and_b32 v20, 0x7f, v20")
    a("s_waitcnt vmcnt(0)")
    stamp(a, 6)
    a("v_mov_b32 v11, 1")
    a("s_mov_b64 s[60:61], exec")
    a("s_mov_b64 exec, 1")
    a("ds_add_rtn_u32 v21, v10, v11 offset:8")
    a("s_waitcnt lgkmcnt(0)")
    a("v_readfirstlane_b32 s62, v21")
    a("s_cmp_lg_u32 s62, 3")
    a("s_cbranch_scc1 K2_NOPUB")
    a("s_lshl_b32 s3, s2, 2")
    a(f"s_add_u32 s3, s3, {FL_OFF}")
    a("v_mov_b32 v21, 0")
    a("buffer_store_dword v11, v21, s[12:15], s3 offen sc1")
    a("s_mov_b64 exec, s[60:61]")
    a("s_mov_b32 s53, 0")
    a.label("K2_POLL")
    a("buffer_load_dword v21, v20, s[12:15], s52 offen sc1")
    a("s_add_u32 s53, s53, 1")
    a("s_waitcnt vmcnt(0)")
    a("v_cmp_ne_u32 vcc, 1, v21")
    a("s_cmp_gt_u32 s53, 0x10000")
    a("s_cbranch_scc1 K2_POLLED")
    a("s_cbranch_vccz K2_POLLED")
    a("s_sleep 4")
    a("s_branch K2_POLL")
    a.label("K2_POLLED")
    a("ds_write_b32 v10, v11 offset:12")
    a.label("K2_NOPUB")
    a("s_mov_b64 exec, s[60:61]")
    lds_wait(a, 12, 1, 10, 21, "K2_S3", sleep=2)
    stamp(a, 7)
    for p4 in range(4):
        if p4:
            a("s_add_u32 s50, s50, 0x20000")
        a(f"buffer_load_dwordx4 v[{64+4*p4}:{64+4*p4+3}], v16, s[12:15], s50 offen sc1")
    for p4 in range(4):
        a(f"s_waitcnt vmcnt({3-p4})")
        for e in range(4):
            a(f"ds_write_b32 v{17 + (p4 & 1)}, v{64+4*p4+e} offset:{YP + 272*e + 128*(p4 >> 1)}")


def gen_final(a):
    a("v_lshrrev_b32 v5, 3, v0")
    a("v_and_b32 v6, 7, v0")
    a("v_lshlrev_b32 v7, 10, v5")
    a("v_lshl_add_u32 v7, v6, 4, v7")
    a("v_mul_u32_u24 v8, 272, v5")
    a("v_lshl_add_u32 v9, v6, 5, v8")
    a(f"v_add_u32 v9, {RED}, v9")
    a("v_bfe_u32 v10, v5, 2, 3")
    a("v_lshlrev_b32 v11, 1, v6")
    a("v_xor_b32 v10, v10, v11")
    a("v_xor_b32 v11, 1, v10")
    a("v_lshl_add_u32 v10, v10, 4, v8")
    a("v_lshl_add_u32 v11, v11, 4, v8")
    a("s_waitcnt vmcnt(0) lgkmcnt(0)")
    stamp(a, 8)
    a("s_barrier")
    stamp(a, 9)
    P = 16
    for w in range(4):
        a(f"ds_read_b128 v[{P+8*w}:{P+8*w+3}], v9 offset:{17408*w}")
        a(f"ds_read_b128 v[{P+8*w+4}:{P+8*w+7}], v9 offset:{17408*w+16}")
    Y = 48
    a(f"ds_read_b128 v[{Y}:{Y+3}], v10 offset:{YP}")
    a(f"ds_read_b128 v[{Y+4}:{Y+7}], v11 offset:{YP}")
    X = 56
    N = 64
    D = 72
    Q = 80

    def unpack(dst, src):
        for k in range(4):
            a(f"v_lshlrev_b32 v{dst+2*k}, 16, v{src+k}")
            a(f"v_and_b32 v{dst+2*k+1}, 0xffff0000, v{src+k}")

    def rnd(reg):
        for k in range(4):
            a(f"v_cvt_pk_bf16_f32 v{Q+k}, v{reg+2*k}, v{reg+2*k+1}")
        unpack(reg, Q)

    unpack(X, EP)
    unpack(D, EP + 4)
    for k in range(4):
        a(f"v_pk_add_f32 v[{N+2*k}:{N+2*k+1}], v[{X+2*k}:{X+2*k+1}], v[{EP+8}:{EP+9}] op_sel_hi:[1,0]")
    rnd(N)
    for k in range(4):
        a(f"v_pk_mul_f32 v[{N+2*k}:{N+2*k+1}], v[{N+2*k}:{N+2*k+1}], v[{EP+8}:{EP+9}] op_sel:[0,1] op_sel_hi:[1,1]")
    rnd(N)
    for k in range(4):
        a(f"v_pk_mul_f32 v[{N+2*k}:{N+2*k+1}], v[{N+2*k}:{N+2*k+1}], v[{D+2*k}:{D+2*k+1}]")
    rnd(N)
    a("s_waitcnt lgkmcnt(0)")
    rnd(Y)
    for k in range(4):
        a(f"v_pk_add_f32 v[{P+2*k}:{P+2*k+1}], v[{P+2*k}:{P+2*k+1}], v[{P+8+2*k}:{P+8+2*k+1}]")
        a(f"v_pk_add_f32 v[{P+16+2*k}:{P+16+2*k+1}], v[{P+16+2*k}:{P+16+2*k+1}], v[{P+24+2*k}:{P+24+2*k+1}]")
    for k in range(4):
        a(f"v_pk_add_f32 v[{P+2*k}:{P+2*k+1}], v[{P+2*k}:{P+2*k+1}], v[{P+16+2*k}:{P+16+2*k+1}]")
        a(f"v_pk_add_f32 v[{Y+2*k}:{Y+2*k+1}], v[{Y+2*k}:{Y+2*k+1}], v[{N+2*k}:{N+2*k+1}]")
    rnd(P)
    rnd(Y)
    for k in range(4):
        a(f"v_pk_add_f32 v[{Y+2*k}:{Y+2*k+1}], v[{Y+2*k}:{Y+2*k+1}], v[{X+2*k}:{X+2*k+1}]")
    rnd(Y)
    for k in range(4):
        a(f"v_pk_add_f32 v[{Y+2*k}:{Y+2*k+1}], v[{Y+2*k}:{Y+2*k+1}], v[{P+2*k}:{P+2*k+1}]")
    for k in range(4):
        a(f"v_cvt_pk_bf16_f32 v{Q+k}, v{Y+2*k}, v{Y+2*k+1}")
    a(f"buffer_store_dwordx4 v[{Q}:{Q+3}], v7, s[24:27], s44 offen")
```

```python
import os
import sys
from asmgen import Asm

REF = "parallel_sum__ssm_conv_s4d__glu_gated_reglu__prompt.s.ref"

H_OFF = 0x0
WD_OFF = 0x600000
XT_OFF = 0x800000
KT_OFF = 0xA00000
Y_OFF = 0xC00000
ST_OFF = 0x1000000
KS_OFF = 0x1010000
FL_OFF = 0x1020000
WS_SIZE = 0x1100000

OPT = dict(
    kgen_bar2=int(os.environ.get("KGEN_BAR2", "0")),
    exact=int(os.environ.get("EXACT", "0")),
    wt=os.environ.get("WT", "sc1"),
    rot=int(os.environ.get("ROT", "1")),
    pace=int(os.environ.get("PACE", "1")),
    prio=int(os.environ.get("PRIO", "1")),
)
WT = (" " + OPT["wt"]) if OPT["wt"] else ""


STAMPS = int(os.environ.get("STAMPS", "0"))
DBG_OFF = 0x1040000


def stamp(a, k):
    if not STAMPS:
        return
    a("s_memrealtime s[98:99]")
    a("s_waitcnt lgkmcnt(0)")
    a(f"s_mov_b32 s{84+k}, s98")


def stamp_flush(a, kern):
    if not STAMPS:
        return
    a("s_waitcnt vmcnt(0)")
    stamp(a, 11)
    a("s_lshl_b32 s98, s2, 3")
    a("s_add_u32 s98, s98, s42")
    a("s_lshl_b32 s98, s98, 6")
    a(f"s_add_u32 s98, s98, {DBG_OFF + kern*0x20000}")
    a("v_mov_b32 v1, 0")
    a("s_mov_b64 exec, 1")
    for k in range(12):
        a(f"v_mov_b32 v2, s{84+k}")
        a(f"buffer_store_dword v2, v1, s[12:15], s98 offen offset:{4*k}")


def srd(a, r, base, size):
    a(f"s_mov_b32 s{r}, s{base}")
    a(f"s_and_b32 s{r+1}, s{base+1}, 0xffff")
    a(f"s_mov_b32 s{r+2}, {size}")
    a(f"s_mov_b32 s{r+3}, 0x00020000")


def bf16_round(a, dst, src, tmp):
    a(f"v_cvt_pk_bf16_f32 v{tmp}, v{src}, v{src}")
    a(f"v_lshlrev_b32 v{dst}, 16, v{tmp}")


def lds_arrive(a, vaddr, vone, off):
    a("s_mov_b64 exec, 1")
    a(f"ds_add_u32 v{vaddr}, v{vone} offset:{off}")
    a("s_mov_b64 exec, -1")


def lds_poll(a, vaddr, vtmp, off, target, name, sleep=0):
    a("s_mov_b32 s63, 0")
    a.label(name)
    if sleep:
        a(f"s_sleep {sleep}")
    a(f"ds_read_b32 v{vtmp}, v{vaddr} offset:{off}")
    a("s_add_u32 s63, s63, 1")
    a("s_waitcnt lgkmcnt(0)")
    a(f"v_readfirstlane_b32 s62, v{vtmp}")
    a("s_lshr_b32 s59, s63, 22")
    a("s_lshl_b32 s59, s59, 8")
    a("s_add_u32 s62, s62, s59")
    a(f"s_cmp_lt_u32 s62, {target}")
    a(f"s_cbranch_scc1 {name}")


class LdsQ:
    def __init__(self, a):
        self.a = a
        self.n = 0
        self.done = 0

    def issue(self, text):
        self.a(text)
        self.n += 1
        return self.n

    def wait(self, tag):
        if tag <= self.done:
            return
        out = self.n - tag
        assert out <= 15, out
        self.a(f"s_waitcnt lgkmcnt({out})")
        self.done = tag


XS = 0
WS_ = 49152
SD = 135168
PR = 151552
CS = 156672
CNT1 = 157440
RSX = 157696
LDS1 = 158720


def gen_k1(a):
    a.label("k1_kernel")
    a("s_cmp_ge_u32 s2, 256")
    a("s_cbranch_scc1 K1_END")
    stamp(a, 0)
    a("s_load_dwordx16 s[16:31], s[0:1], 0")
    a("s_load_dwordx4 s[32:35], s[0:1], 64")
    a("s_load_dwordx2 s[36:37], s[0:1], 80")
    a("s_load_dwordx2 s[38:39], s[0:1], 104")
    a("v_lshrrev_b32 v1, 6, v0")
    a("v_and_b32 v2, 63, v0")
    a("v_readfirstlane_b32 s42, v1")
    a("s_and_b32 s3, s2, 1")
    a("s_lshl_b32 s40, s3, 3")
    a("s_bfe_u32 s3, s2, 0x30003")
    a("s_add_u32 s40, s40, s3")
    a("s_bfe_u32 s41, s2, 0x20001")
    a("s_lshl_b32 s41, s41, 2")
    a("s_lshr_b32 s3, s2, 6")
    a("s_add_u32 s41, s41, s3")
    a("v_and_b32 v3, 15, v2")
    a("v_lshrrev_b32 v4, 4, v2")
    a(f"v_mov_b32 v214, {CNT1}")
    a("v_mov_b32 v215, 1")
    a("v_mov_b32 v212, 0")
    a("v_mov_b32 v213, 0")
    a("ds_write_b64 v214, v[212:213]")
    a("ds_write_b64 v214, v[212:213] offset:8")
    a("s_cmp_ge_u32 s42, 4")
    a("s_cbranch_scc1 K1_SIDE")
    a("s_cmp_ge_u32 s41, 15")
    a("s_cbranch_scc1 K1_END")
    gen_k1_gemm(a)
    stamp(a, 5)
    stamp_flush(a, 0)
    a("s_endpgm")
    a.label("K1_SIDE")
    gen_k1_side(a)
    stamp(a, 6)
    stamp_flush(a, 0)
    a.label("K1_END")
    a("s_endpgm")


def gen_k1_gemm(a):
    vXo = 8
    vWo = 12
    XB = 16
    WB = 20
    XA = 204
    WA = 216
    ONES = 28
    XF = 32
    ACC = 80
    RS = 176
    GR = 184
    CSA = 192

    def wbuf(t):
        return (64 + 4 * t) if t < 4 else (228 + 4 * (t - 4))

    a("s_mul_i32 s43, s41, 3")
    a("s_min_u32 s43, s43, 40")
    a("s_lshr_b32 s71, s42, 1")
    a("s_and_b32 s72, s42, 1")
    a("v_lshrrev_b32 v5, 3, v2")
    a("v_and_b32 v6, 7, v2")
    a("v_xor_b32 v6, v6, v4")
    a("s_lshl_b32 s3, s40, 7")
    a("s_lshl_b32 s55, s42, 5")
    a("s_add_u32 s3, s3, s55")
    a("v_add_u32 v5, s3, v5")
    a("v_lshlrev_b32 v5, 10, v5")
    a(f"v_lshl_add_u32 v{vXo}, v6, 4, v5")
    a("v_xor_b32 v6, 4, v6")
    a(f"v_lshl_add_u32 v{vXo+1}, v6, 4, v5")
    a(f"v_add_u32 v{vXo+1}, {8192-1024}, v{vXo+1}")
    a(f"v_add_u32 v{vXo+2}, {2*(8192-1024)}, v{vXo}")
    a(f"v_add_u32 v{vXo+3}, {2*(8192-1024)}, v{vXo+1}")
    a(f"s_mul_i32 s3, s72, {16*2752}")
    a("s_lshl_b32 s55, s43, 6")
    a("s_add_u32 s3, s3, s55")
    a("v_lshrrev_b32 v5, 2, v2")
    a("v_and_b32 v6, 3, v2")
    for i in range(3):
        a(f"v_add_u32 v7, {16*i}, v5")
        a("v_mul_u32_u24 v26, 43, v7")
        a("v_lshrrev_b32 v26, 7, v26")
        a("v_mul_u32_u24 v27, 3, v26")
        a("v_sub_u32 v7, v7, v27")
        a("v_lshrrev_b32 v27, 2, v26")
        a("v_and_b32 v27, 2, v27")
        a("v_xor_b32 v27, v27, v6")
        a("v_mul_u32_u24 v26, 2752, v26")
        a("v_lshl_add_u32 v26, v7, 6, v26")
        a("v_lshl_add_u32 v26, v27, 4, v26")
        a("v_add_u32 v26, s3, v26")
        a(f"v_subrev_u32 v{vWo+i}, {1024*i}, v26")
    a("s_lshl_b32 s53, s42, 12")
    a("s_mul_i32 s54, s42, 3072")
    a(f"s_add_u32 s54, s54, {WS_}")
    if OPT["rot"]:
        a("s_and_b32 s3, s41, 3")
        a("s_lshl_b32 s3, s3, 1")
        a("s_add_u32 s3, s3, s40")
        a("s_and_b32 s3, s3, 7")
    else:
        a("s_mov_b32 s3, 0")
    a("s_lshl_b32 s51, s3, 7")
    a(f"s_mul_i32 s52, s3, {2*88064}")
    a("s_waitcnt lgkmcnt(0)")
    srd(a, 4, 16, 2097152)
    a("s_cmp_ge_u32 s42, 2")
    a("s_cselect_b32 s8, s34, s32")
    a("s_cselect_b32 s9, s35, s33")
    a("s_and_b32 s9, s9, 0xffff")
    a("s_mov_b32 s10, 1409024")
    a("s_mov_b32 s11, 0x00020000")
    srd(a, 12, 38, WS_SIZE)

    def dma_x(slot_s, soff_s):
        a(f"s_add_u32 m0, {slot_s}, s53")
        for i in range(4):
            a(f"buffer_load_dwordx4 v{vXo+i}, s[4:7], {soff_s} offen offset:{1024*i} lds")

    def dma_w(slot_s, soff_s):
        a(f"s_add_u32 m0, {slot_s}, s54")
        for i in range(3):
            a(f"buffer_load_dwordx4 v{vWo+i}, s[8:11], {soff_s} offen offset:{1024*i} lds")

    def adv_x():
        a("s_add_u32 s51, s51, 128")
        a("s_and_b32 s51, s51, 1023")

    def adv_w():
        a("s_add_u32 s52, s52, 88064")
        a(f"s_cmp_eq_u32 s52, {16*88064}")
        a("s_cselect_b32 s52, 0, s52")

    def issue(groups):
        for kind, idx in groups:
            if kind == "x":
                dma_x(f"{idx*16384}", "s51")
                adv_x()
            else:
                dma_w(f"{idx*12288}", "s52")
                adv_w()

    G1 = [("x", 0), ("w", 0), ("w", 1)]
    G2 = [("x", 1), ("w", 2), ("w", 3), ("w", 4)]
    issue(G1)
    a("s_barrier")
    if not OPT["pace"]:
        issue(G2)
    a("v_lshrrev_b32 v5, 1, v3")
    a("v_xor_b32 v5, v5, v4")
    a("v_lshlrev_b32 v6, 7, v3")
    a("v_lshl_add_u32 v5, v5, 4, v6")
    a("s_lshl_b32 s3, s71, 13")
    a("s_lshl_b32 s55, s72, 12")
    a("s_add_u32 s3, s3, s55")
    a(f"v_add_u32 v{XB}, s3, v5")
    a(f"v_xor_b32 v{XB+1}, 0x1000, v{XB}")
    a(f"v_xor_b32 v{XB+2}, 64, v{XB}")
    a(f"v_xor_b32 v{XB+3}, 64, v{XB+1}")
    a("v_bfe_u32 v5, v2, 2, 2")
    a("v_lshl_add_u32 v5, v4, 3, v5")
    a("v_mul_u32_u24 v5, 192, v5")
    a("v_and_b32 v6, 1, v2")
    a("v_lshl_add_u32 v5, v6, 3, v5")
    a("v_bfe_u32 v6, v2, 1, 1")
    a("v_and_b32 v7, 1, v4")
    a("v_lshl_add_u32 v6, v7, 1, v6")
    a("v_lshl_add_u32 v5, v6, 4, v5")
    a("s_mul_i32 s55, s71, 6144")
    a("s_mul_i32 s56, s72, 3")
    for p in range(3):
        a(f"s_add_u32 s3, s56, {p}")
        a("s_and_b32 s57, s3, 1")
        a("s_lshl_b32 s57, s57, 5")
        a("s_lshr_b32 s3, s3, 1")
        a("s_lshl_b32 s3, s3, 6")
        a(f"s_add_u32 s3, s3, {WS_}")
        a("v_xor_b32 v6, s57, v5")
        a("s_add_u32 s57, s3, s55")
        a(f"v_add_u32 v{WB+p}, s57, v6")
        a("s_sub_u32 s57, s3, s55")
        a("s_add_u32 s57, s57, 6144")
        a(f"v_add_u32 v{WB+3+p}, s57, v6")
    for i in range(4):
        a(f"v_mov_b32 v{ONES+i}, 0x3f803f80")
    for r in range(ACC, CSA + 12):
        a(f"v_mov_b32 v{r}, 0")
    a("s_mov_b32 s44, 0")
    a("s_mov_b32 s45, 0")
    a("s_mov_b32 s46, 0")
    a("s_mov_b32 s47, 12288")
    a("s_mov_b32 s64, 32768")
    a(f"s_mov_b32 s65, {5*12288}")
    a(f"s_mov_b32 s66, {6*12288}")
    a("s_mov_b32 s67, 4")
    q = LdsQ(a)
    tagX = {}
    tagW = {}

    def addrs(ks):
        for pr in range(2):
            a(f"v_add_u32 v{XA+2*ks+pr}, s45, v{XB+2*ks+pr}")
        for P in range(6):
            a(f"v_add_u32 v{WA+6*ks+P}, {'s46' if ks == 0 else 's47'}, v{WB+P}")

    def rd_x(ks):
        for pos in range(4):
            r = XF + (ks * 4 + pos) * 4
            tagX[(ks, pos)] = q.issue(f"ds_read_b128 v[{r}:{r+3}], v{XA+2*ks+(pos>>1)} offset:{(pos&1)*2048}")

    def rd_w(t):
        t %= 12
        r = wbuf(t % 8)
        q.issue(f"ds_read_b64_tr_b16 v[{r}:{r+1}], v{WA+t}")
        tagW[t] = q.issue(f"ds_read_b64_tr_b16 v[{r+2}:{r+3}], v{WA+t} offset:768")

    addrs(0)
    stamp(a, 1)
    a(f"s_waitcnt vmcnt({0 if OPT['pace'] else 13})")
    stamp(a, 6)
    lds_arrive(a, 214, 215, 0)
    if OPT["pace"]:
        issue(G2)
    lds_poll(a, 214, 212, 0, "s67", "K1_P0")
    stamp(a, 2)
    if STAMPS:
        a("s_memtime s[98:99]")
        a("s_waitcnt lgkmcnt(0)")
        a("s_mov_b32 s91, s98")
    LA = 3
    fill = []

    class Rec:
        def __call__(self, text):
            fill.append(text)

    rec = Rec()

    def flush(n=None):
        k = 0
        while fill and (n is None or k < n):
            a(fill.pop(0))
            k += 1

    def src_update(e):
        e("s_cmp_ge_u32 s44, 6")
        e("s_cselect_b32 s68, 0x7f000000, s51")
        e("s_cselect_b32 s69, 0x7f000000, s52")

    def src_advance(e):
        e("s_add_u32 s51, s51, 128")
        e("s_and_b32 s51, s51, 1023")
        for last in (0, 1):
            e("s_add_u32 s52, s52, 88064")
            e(f"s_cmp_eq_u32 s52, {16*88064}")
            e("s_cselect_b32 s52, 0, s52")
            if not last:
                e("s_cmp_ge_u32 s44, 5")
                e("s_cselect_b32 s70, 0x7f000000, s52")

    def addrs_e(e, ks):
        for pr in range(2):
            e(f"v_add_u32 v{XA+2*ks+pr}, s45, v{XB+2*ks+pr}")
        for P in range(6):
            e(f"v_add_u32 v{WA+6*ks+P}, {'s46' if ks == 0 else 's47'}, v{WB+P}")

    src_update(a)
    rd_x(0)
    rd_w(0)
    rd_w(1)
    a.label("K1_LOOP")
    rd_w(2)
    addrs_e(rec, 1)
    src_advance(rec)
    dmas = []
    for i in range(4):
        dmas.append(("s64", "s53", f"buffer_load_dwordx4 v{vXo+i}, s[4:7], s68 offen offset:{1024*i} lds", i == 0))
    for slot, so in (("s65", "s69"), ("s66", "s70")):
        for i in range(3):
            dmas.append((slot, "s54", f"buffer_load_dwordx4 v{vWo+i}, s[8:11], {so} offen offset:{1024*i} lds", i == 0))

    def dma():
        slot, wb, ins, first = dmas.pop(0)
        if first:
            a(f"s_add_u32 m0, {slot}, {wb}")
        if not os.environ.get("DBG_NODMA"):
            a(ins)

    def mf(c, A_, B_, nfill=2):
        a(f"v_mfma_f32_16x16x32_bf16 v[{c}:{c+3}], v[{A_}:{A_+3}], v[{B_}:{B_+3}], v[{c}:{c+3}]")
        flush(nfill)

    for t in range(12):
        ks, P = divmod(t, 6)
        w = wbuf(t % 8)
        if P == 0:
            for pos in range(2):
                q.wait(tagX[(ks, pos)])
                x = XF + (ks * 4 + pos) * 4
                mf(RS + 4 * pos, ONES, x)
                mf(GR + 4 * pos, x, x)
        if t == 5:
            assert not fill
        if t == 9:
            q.wait(q.n)
            a("s_waitcnt vmcnt(13)")
            lds_arrive(a, 214, 215, 0)
            for e_ in ("s_mov_b32 s64, s45", "s_mov_b32 s65, s46", "s_mov_b32 s66, s47",
                       "s_add_u32 s45, s45, 16384", "s_cmp_eq_u32 s45, 49152", "s_cselect_b32 s45, 0, s45",
                       "s_add_u32 s46, s47, 12288", f"s_cmp_eq_u32 s46, {7*12288}", "s_cselect_b32 s46, 0, s46"):
                rec(e_)
            addrs_e(rec, 0)
            for e_ in ("s_add_u32 s47, s46, 12288", f"s_cmp_eq_u32 s47, {7*12288}", "s_cselect_b32 s47, 0, s47",
                       "s_add_u32 s67, s67, 4", "s_add_u32 s44, s44, 1"):
                rec(e_)
        if t == 11:
            flush()
            a("s_waitcnt lgkmcnt(0)")
            a("v_readfirstlane_b32 s62, v212")
            a("s_cmp_ge_u32 s62, s67")
            a("s_cbranch_scc1 K1_GO")
            lds_poll(a, 214, 212, 0, "s67", "K1_P1")
            a.label("K1_GO")
            q.n = q.done = 0
            rd_x(0)
            src_update(rec)
        if t < 9:
            q.wait(tagW[t])
            q.wait(tagX[(ks, 3)])
        for pos in range(4):
            x = XF + (ks * 4 + pos) * 4
            busy = False
            a(f"v_mfma_f32_16x16x32_bf16 v[{ACC+(P*4+pos)*4}:{ACC+(P*4+pos)*4+3}], v[{w}:{w+3}], v[{x}:{x+3}], v[{ACC+(P*4+pos)*4}:{ACC+(P*4+pos)*4+3}]")
            if pos == 0 and t + LA < 12:
                rd_w(t + LA)
                busy = True
            if pos == 1 and dmas and t < 9:
                dma()
                busy = True
            if pos == 2 and t == 2:
                rd_x(1)
                busy = True
            if pos == 1 and t == 10:
                a("ds_read_b32 v212, v214")
            if t == 11 and pos < 2:
                rd_w(pos)
                busy = True
            if not busy:
                flush(3 if t >= 9 else 2)
        if P < 3:
            mf(CSA + 4 * P, w, ONES)
        if t in (0,) and dmas:
            dma()
    flush()
    assert not dmas, len(dmas)
    a("s_cmp_lt_u32 s44, 8")
    a("s_cbranch_scc1 K1_LOOP")
    a("s_waitcnt lgkmcnt(0)")
    if STAMPS:
        a("s_memtime s[98:99]")
        a("s_waitcnt lgkmcnt(0)")
        a("s_mov_b32 s92, s98")

    stamp(a, 3)
    a("s_mul_i32 s3, s71, 384")
    a("s_mul_i32 s55, s72, 192")
    a(f"s_add_u32 s55, s55, {CS}")
    a("s_add_u32 s3, s3, s55")
    a("v_lshlrev_b32 v5, 4, v4")
    a("v_add_u32 v6, s3, v5")
    a("s_mul_i32 s3, s71, 384")
    a("s_sub_u32 s3, s55, s3")
    a("s_add_u32 s3, s3, 384")
    a("v_add_u32 v5, s3, v5")
    for p in range(3):
        a(f"ds_write_b128 v6, v[{CSA+4*p}:{CSA+4*p+3}] offset:{64*p}")
    a("v_and_b32 v7, 3, v3")
    a("v_lshrrev_b32 v8, 2, v3")
    a("v_lshl_add_u32 v8, v8, 4, v3")
    a("v_lshlrev_b32 v8, 2, v8")
    a("v_cmp_eq_u32 s[56:57], 1, v7")
    a("v_cmp_eq_u32 s[58:59], 2, v7")
    a("v_cmp_eq_u32 s[60:61], 3, v7")
    for pos in range(2):
        g = GR + 4 * pos
        a(f"v_cndmask_b32 v9, v{g}, v{g+1}, s[56:57]")
        a(f"v_cndmask_b32 v9, v9, v{g+2}, s[58:59]")
        a(f"v_cndmask_b32 v9, v9, v{g+3}, s[60:61]")
        a(f"ds_bpermute_b32 v{14+pos}, v8, v9")
    PM = [16, 18, 20, 22]
    a("s_lshl_b32 s3, s42, 8")
    a(f"s_add_u32 s3, s3, {RSX}")
    a("v_lshlrev_b32 v10, 3, v3")
    a("v_add_u32 v11, s3, v10")
    a("s_xor_b32 s3, s3, 256")
    a("v_add_u32 v10, s3, v10")
    a("s_waitcnt lgkmcnt(0)")
    for pos in range(2):
        nm, ri = PM[pos], PM[pos] + 1
        a(f"v_mul_f32 v24, 0x3b000000, v{RS+4*pos}")
        a(f"v_mul_f32 v25, 0x3b000000, v{14+pos}")
        a("v_fma_f32 v25, -v24, v24, v25")
        a("v_max_f32 v25, 0, v25")
        bf16_round(a, 24, 24, 26)
        bf16_round(a, 25, 25, 26)
        a("v_add_f32 v25, 0x3727c5ac, v25")
        bf16_round(a, 25, 25, 26)
        a("v_sqrt_f32 v25, v25")
        bf16_round(a, 25, 25, 26)
        a(f"v_rcp_f32 v{ri}, v25")
        a(f"v_sub_f32 v{nm}, 0, v24")
        a(f"ds_write_b64 v11, v[{nm}:{nm+1}] offset:{128*pos}")
    a("s_waitcnt lgkmcnt(0)")
    lds_arrive(a, 214, 215, 0)
    lab = a.newlabel("K1_NOST")
    a("s_cmp_lg_u32 s41, 0")
    a(f"s_cbranch_scc1 {lab}")
    a("s_lshl_b32 s3, s40, 7")
    a("s_lshl_b32 s55, s42, 5")
    a("s_add_u32 s3, s3, s55")
    a("s_lshl_b32 s3, s3, 2")
    a(f"s_add_u32 s3, s3, {ST_OFF}")
    a("s_add_u32 s55, s3, 8192")
    a("v_lshlrev_b32 v24, 2, v3")
    a("s_mov_b64 exec, 0xffff")
    for pos in range(2):
        a(f"buffer_store_dword v{PM[pos]}, v24, s[12:15], s3 offen offset:{64*pos}")
        a(f"buffer_store_dword v{PM[pos]+1}, v24, s[12:15], s55 offen offset:{64*pos}")
    a("s_mov_b64 exec, -1")
    a.label(lab)
    a("s_lshl_b32 s3, s40, 1")
    a("s_add_u32 s3, s3, s71")
    a("s_mul_i32 s3, s3, 43")
    a("s_add_u32 s3, s3, s43")
    a("s_lshl_b32 s3, s3, 12")
    a("s_lshl_b32 s55, s72, 11")
    a("s_add_u32 s56, s3, s55")
    a("s_sub_u32 s57, s3, s55")
    a("s_add_u32 s57, s57, 2048")
    a("s_cmp_eq_u32 s71, 0")
    a("s_cselect_b32 s58, 0, 0xff800000")
    a("s_cselect_b32 s59, 0xff800000, 0")
    a("s_mov_b32 s60, s58")
    a("s_mov_b32 s61, s59")
    a("v_lshlrev_b32 v24, 4, v2")
    lds_poll(a, 214, 212, 0, 40, "K1_P2")
    stamp(a, 4)
    CSR = 32
    a(f"ds_read_b64 v[{PM[2]}:{PM[2]+1}], v10")
    a(f"ds_read_b64 v[{PM[3]}:{PM[3]+1}], v10 offset:128")
    for p in range(3):
        a(f"ds_read_b128 v[{CSR+12+4*p}:{CSR+12+4*p+3}], v5 offset:{64*p}")
    QQ = 56
    for pos in range(4):
        if pos == 0:
            a("s_waitcnt lgkmcnt(0)")
        Pm = PM[pos]
        a(f"v_mul_f32 v25, v{Pm+1}, v{Pm+1}")
        for p in range(3):
            A_ = ACC + (p * 4 + pos) * 4
            B_ = ACC + ((3 + p) * 4 + pos) * 4
            for k in (0, 2):
                a(f"v_pk_fma_f32 v[{A_+k}:{A_+k+1}], v[{CSA+4*p+k}:{CSA+4*p+k+1}], v[{Pm}:{Pm+1}], v[{A_+k}:{A_+k+1}] op_sel_hi:[1,0,1]")
                a(f"v_pk_fma_f32 v[{B_+k}:{B_+k+1}], v[{CSR+12+4*p+k}:{CSR+12+4*p+k+1}], v[{Pm}:{Pm+1}], v[{B_+k}:{B_+k+1}] op_sel_hi:[1,0,1]")
            for k in range(4):
                a(f"v_max_f32 v{A_+k}, s60, v{A_+k}")
                a(f"v_max_f32 v{B_+k}, s61, v{B_+k}")
            for k in (0, 2):
                a(f"v_pk_mul_f32 v[{A_+k}:{A_+k+1}], v[{A_+k}:{A_+k+1}], v[{B_+k}:{B_+k+1}]")
            for k in (0, 2):
                a(f"v_pk_mul_f32 v[{A_+k}:{A_+k+1}], v[{A_+k}:{A_+k+1}], v[24:25] op_sel:[0,1] op_sel_hi:[1,1]")
            a(f"v_cvt_pk_bf16_f32 v{QQ+6*pos+2*p}, v{A_}, v{A_+1}")
            a(f"v_cvt_pk_bf16_f32 v{QQ+6*pos+2*p+1}, v{A_+2}, v{A_+3}")
    a("s_add_u32 s58, s56, 4096")
    a("s_add_u32 s59, s57, 4096")
    a("s_cmp_lg_u32 s72, 0")
    a("s_cbranch_scc1 K1_ST1")
    for pos in range(4):
        Q = QQ + 6 * pos
        s0, s1 = ("s56", "s58") if pos < 2 else ("s57", "s59")
        a(f"buffer_store_dwordx4 v[{Q}:{Q+3}], v24, s[12:15], {s0} offen offset:{(pos&1)*1024}{WT}")
        a(f"buffer_store_dwordx2 v[{Q+4}:{Q+5}], v24, s[12:15], {s1} offen offset:{(pos&1)*1024}{WT}")
    a("s_branch K1_STD")
    a.label("K1_ST1")
    a("s_add_u32 s56, s58, 4096")
    a("s_add_u32 s57, s59, 4096")
    for pos in range(4):
        Q = QQ + 6 * pos
        s0, s1 = ("s56", "s58") if pos < 2 else ("s57", "s59")
        a(f"buffer_store_dwordx2 v[{Q}:{Q+1}], v24, s[12:15], {s1} offen offset:{(pos&1)*1024+8}{WT}")
        a(f"buffer_store_dwordx4 v[{Q+2}:{Q+5}], v24, s[12:15], {s0} offen offset:{(pos&1)*1024}{WT}")
    a.label("K1_STD")


def gen_k1_side(a):
    a("s_sub_u32 s43, s42, 4")
    a("s_lshr_b32 s44, s43, 1")
    a("s_lshl_b32 s45, s2, 1")
    a("s_add_u32 s45, s45, s44")
    a("s_and_b32 s46, s43, 1")
    a("v_lshrrev_b32 v5, 2, v2")
    a("v_and_b32 v6, 3, v2")
    a("v_lshlrev_b32 v7, 10, v5")
    a("v_lshl_add_u32 v7, v6, 4, v7")
    a(f"v_add_u32 v8, {16384-1024}, v7")
    a("s_lshl_b32 s3, s45, 8")
    a("s_lshl_b32 s47, s46, 7")
    a("s_add_u32 s47, s47, s3")
    a("v_lshlrev_b32 v9, 1, v2")
    a("v_lshlrev_b32 v10, 2, v2")
    a("s_lshl_b32 s48, s45, 1")
    a("v_mov_b32 v11, s48")
    a("s_waitcnt lgkmcnt(0)")
    srd(a, 4, 16, 2097152)
    srd(a, 8, 36, 1409024)
    srd(a, 12, 38, WS_SIZE)
    srd(a, 64, 18, 131072)
    srd(a, 68, 20, 131072)
    srd(a, 72, 22, 131072)
    srd(a, 76, 24, 131072)
    srd(a, 80, 26, 1024)
    a("buffer_load_ushort v20, v9, s[64:67], s47 offen")
    a("buffer_load_ushort v21, v9, s[68:71], s47 offen")
    a("buffer_load_ushort v22, v9, s[72:75], s47 offen")
    a("buffer_load_ushort v23, v9, s[76:79], s47 offen")
    a("buffer_load_dword v24, v10, s[72:75], s3 offen")
    a("buffer_load_dword v25, v10, s[76:79], s3 offen")
    a("buffer_load_ushort v26, v11, s[80:83], 0 offen")
    a("s_lshl_b32 s49, s40, 7")
    a("s_lshl_b32 s50, s43, 5")
    a("s_add_u32 s49, s49, s50")
    a("s_lshl_b32 s49, s49, 10")
    a("s_lshl_b32 s50, s41, 6")
    a("s_add_u32 s49, s49, s50")
    a("s_lshl_b32 s51, s43, 12")
    a(f"s_add_u32 s51, s51, {SD}")
    a("s_mov_b32 m0, s51")
    a("buffer_load_dwordx4 v7, s[4:7], s49 offen lds")
    a("buffer_load_dwordx4 v8, s[4:7], s49 offen offset:1024 lds")
    a("s_lshr_b32 s52, s2, 2")
    a("s_and_b32 s53, s2, 3")
    a("s_lshl_b32 s49, s52, 15")
    a("s_lshl_b32 s50, s53, 8")
    a("s_add_u32 s49, s49, s50")
    a("s_lshl_b32 s50, s43, 6")
    a("s_add_u32 s49, s49, s50")
    a("s_add_u32 s50, s51, 2048")
    a("s_mov_b32 m0, s50")
    a("buffer_load_dwordx4 v7, s[8:11], s49 offen lds")
    a("buffer_load_dwordx4 v8, s[8:11], s49 offen offset:1024 lds")
    a("s_barrier")
    TA = 28
    a("v_lshrrev_b32 v12, 3, v3")
    a("v_and_b32 v13, 7, v3")
    a("v_lshl_add_u32 v12, v12, 7, v13")
    a(f"v_cvt_f32_u32 v{TA}, v12")
    a("v_lshrrev_b32 v12, 2, v3")
    a("v_and_b32 v13, 3, v3")
    a("v_lshlrev_b32 v12, 7, v12")
    a("v_lshl_add_u32 v12, v13, 1, v12")
    a("v_add_u32 v12, 256, v12")
    a("v_lshrrev_b32 v13, 1, v3")
    a("v_and_b32 v14, 1, v3")
    a("v_lshlrev_b32 v13, 7, v13")
    a("v_lshl_add_u32 v13, v14, 2, v13")
    a("v_cmp_gt_u32 vcc, 8, v3")
    a("v_cndmask_b32 v12, v13, v12, vcc")
    a(f"v_cvt_f32_u32 v{TA+1}, v12")
    a("v_lshlrev_b32 v12, 7, v3")
    a("v_add_u32 v12, 0x400, v12")
    a(f"v_cvt_f32_u32 v{TA+2}, v12")
    a("v_lshlrev_b32 v12, 3, v3")
    a(f"v_cvt_f32_u32 v{TA+3}, v12")
    IDX = 32
    a("v_subrev_u32 v12, 0x100, v0")
    a("v_lshlrev_b32 v12, 3, v12")
    a("s_movk_i32 s3, 0x7fff")
    a("v_mov_b32 v17, 0x20000")
    for e in range(8):
        a(f"v_add_u32 v13, {e}, v12")
        a("v_cvt_f32_u32 v13, v13")
        a("v_bfe_u32 v14, v13, 16, 1")
        a("v_add3_u32 v13, v13, v14, s3")
        a("v_and_b32 v13, 0xffff0000, v13")
        a("v_cvt_u32_f32 v14, v13")
        a("v_lshrrev_b32 v13, 23, v13")
        a("v_subrev_u32 v13, 134, v13")
        a("v_med3_i32 v13, v13, 0, 3")
        a("v_lshrrev_b32 v15, 7, v14")
        a("v_sub_u32 v16, 3, v13")
        a("v_lshlrev_b32 v15, v16, v15")
        a("v_and_b32 v16, 7, v14")
        a("v_lshrrev_b32 v16, v13, v16")
        a("v_lshl_add_u32 v15, v13, 3, v15")
        a("v_add_u32 v15, v15, v16")
        a("v_bfe_u32 v16, v14, 3, 4")
        a("v_lshl_add_u32 v16, v16, 1, v17")
        a(f"v_lshl_add_u32 v{IDX+e}, v15, 5, v16")
    stamp(a, 1)
    a("v_bfe_u32 v12, v2, 2, 2")
    a("v_lshl_add_u32 v13, v4, 3, v12")
    a("v_lshlrev_b32 v13, 6, v13")
    a("v_lshl_add_u32 v13, v6, 3, v13")
    a("v_add_u32 v13, s51, v13")
    a("v_lshl_add_u32 v14, v4, 2, v12")
    a("v_lshlrev_b32 v14, 6, v14")
    a("v_lshl_add_u32 v14, v6, 3, v14")
    a("v_add_u32 v14, s50, v14")
    a("s_waitcnt vmcnt(0)")
    stamp(a, 3)
    for rho in range(2):
        r = 40 + 4 * rho
        a(f"ds_read_b64_tr_b16 v[{r}:{r+1}], v13 offset:{32*rho}")
        a(f"ds_read_b64_tr_b16 v[{r+2}:{r+3}], v13 offset:{32*rho+256}")
    for rho in range(2):
        r = 48 + 4 * rho
        a(f"ds_read_b64_tr_b16 v[{r}:{r+1}], v14 offset:{32*rho}")
        a(f"ds_read_b64_tr_b16 v[{r+2}:{r+3}], v14 offset:{32*rho+1024}")
    a("s_lshl_b32 s3, s40, 4")
    a("s_lshl_b32 s49, s43, 2")
    a("s_add_u32 s3, s3, s49")
    a("s_lshl_b32 s3, s3, 13")
    a("s_lshl_b32 s49, s41, 9")
    a("s_add_u32 s3, s3, s49")
    a(f"s_add_u32 s3, s3, {XT_OFF}")
    a("v_lshlrev_b32 v15, 13, v4")
    a("v_lshl_add_u32 v15, v3, 4, v15")
    a("v_lshlrev_b32 v16, 4, v2")
    a("s_lshl_b32 s49, s53, 1")
    a("s_add_u32 s49, s49, s44")
    a("s_mul_i32 s49, s49, 43")
    a("s_add_u32 s49, s49, s52")
    a("s_lshl_b32 s49, s49, 2")
    a("s_lshl_b32 s56, s46, 1")
    a("s_add_u32 s49, s49, s56")
    a("s_lshl_b32 s49, s49, 10")
    a(f"s_add_u32 s49, s49, {WD_OFF}")
    a("s_waitcnt lgkmcnt(4)")
    a(f"buffer_store_dwordx4 v[40:43], v15, s[12:15], s3 offen{WT}")
    a(f"buffer_store_dwordx4 v[44:47], v15, s[12:15], s3 offen offset:256{WT}")
    a("s_waitcnt lgkmcnt(0)")
    lab = a.newlabel("K1_NOWD")
    a("s_cmp_ge_u32 s2, 172")
    a(f"s_cbranch_scc1 {lab}")
    a(f"buffer_store_dwordx4 v[48:51], v16, s[12:15], s49 offen{WT}")
    a(f"buffer_store_dwordx4 v[52:55], v16, s[12:15], s49 offen offset:1024{WT}")
    a.label(lab)
    for r in (20, 21, 22, 23, 26):
        a(f"v_lshlrev_b32 v{r}, 16, v{r}")
    a("v_mul_f32 v26, 0x3fb8aa3b, v26")
    a("v_mul_f32 v20, 0x3fb8aa3b, v20")
    a("v_exp_f32 v26, v26")
    a("v_exp_f32 v20, v20")
    a("v_lshlrev_b32 v12, 16, v24")
    a("v_and_b32 v13, 0xffff0000, v24")
    a("v_lshlrev_b32 v14, 16, v25")
    a("v_and_b32 v15, 0xffff0000, v25")
    a("v_max3_f32 v12, |v12|, |v13|, |v14|")
    a("v_max_f32 v12, |v15|, v12")
    bf16_round(a, 26, 26, 13)
    bf16_round(a, 20, 20, 13)
    for sh in (8, 4, 2, 1):
        a(f"v_max_f32_dpp v12, v12, v12 row_ror:{sh} row_mask:0xf bank_mask:0xf")
    a("v_readlane_b32 s56, v12, 0")
    a("v_readlane_b32 s57, v12, 16")
    a("v_readlane_b32 s58, v12, 32")
    a("v_readlane_b32 s59, v12, 48")
    a("s_max_u32 s56, s56, s57")
    a("s_max_u32 s58, s58, s59")
    a("s_max_u32 s56, s56, s58")
    a("v_frexp_exp_i32_f32 v12, s56")
    a("v_sub_u32 v13, 0, v12")
    a("v_mul_f32 v20, v20, v26")
    a("v_mul_f32 v20, 0xbfb8aa3b, v20")
    a("v_mul_f32 v21, v21, v26")
    a("s_mov_b32 s56, 0x3e22f983")
    a("s_mov_b32 s57, 0x31dc9c88")
    a("v_mul_f32 v14, s56, v21")
    a("v_fma_f32 v15, v21, s56, -v14")
    a("v_fma_f32 v15, v21, s57, v15")
    a("v_ldexp_f32 v22, v22, v13")
    a("v_ldexp_f32 v23, v23, v13")
    a("v_add_f32 v26, v26, v26")
    a("v_ldexp_f32 v26, v26, v12")
    a("s_mul_i32 s3, s43, 1280")
    a(f"s_add_u32 s3, s3, {PR}")
    a("v_add_u32 v16, s3, v10")
    a("ds_write_b32 v16, v20")
    a("ds_write_b32 v16, v14 offset:256")
    a("ds_write_b32 v16, v15 offset:512")
    a("ds_write_b32 v16, v22 offset:768")
    a("ds_write_b32 v16, v23 offset:1024")
    a("v_lshlrev_b32 v17, 4, v4")
    a("v_add_u32 v17, s3, v17")
    KA = 40
    for r in range(KA, KA + 12):
        a(f"v_mov_b32 v{r}, 0")
    a("s_lshl_b32 s3, s45, 2")
    a(f"s_add_u32 s3, s3, {KS_OFF}")
    a("v_mov_b32 v12, 0")
    a("v_cmp_eq_u32 vcc, 0, v2")
    a("s_and_saveexec_b64 s[54:55], vcc")
    a("buffer_store_dword v26, v12, s[12:15], s3 offen")
    a("s_lshl_b32 s3, s2, 2")
    a(f"s_add_u32 s3, s3, {FL_OFF}")
    a("buffer_store_dword v12, v12, s[12:15], s3 offen")
    a("s_mov_b64 exec, s[54:55]")
    a("s_mov_b32 s47, 0")
    a("s_waitcnt lgkmcnt(0)")
    stamp(a, 4)
    PP = 52
    FR = 72
    TM = 88
    if os.environ.get("DBG_NOKG"):
        a("s_branch K1_KGEND")
    a.label("K1_KG")
    for p in range(5):
        a(f"ds_read_b128 v[{PP+4*p}:{PP+4*p+3}], v17 offset:{256*p}")
    a("v_add_u32 v17, 64, v17")
    a("s_waitcnt lgkmcnt(0)")
    for i in range(4):
        ar, th, tl, cr, ci = (PP + 4 * p + i for p in range(5))
        t = lambda tile, k: TM + 6 * tile + k
        for tile in range(4):
            a(f"v_mul_f32 v{t(tile,0)}, v{ar}, v{TA+tile}")
            a(f"v_mul_f32 v{t(tile,1)}, v{th}, v{TA+tile}")
        for tile in range(4):
            a(f"v_exp_f32 v{t(tile,0)}, v{t(tile,0)}")
            a(f"v_fma_f32 v{t(tile,2)}, v{th}, v{TA+tile}, -v{t(tile,1)}")
            a(f"v_fract_f32 v{t(tile,1)}, v{t(tile,1)}")
            a(f"v_fma_f32 v{t(tile,2)}, v{tl}, v{TA+tile}, v{t(tile,2)}")
        for tile in range(4):
            a(f"v_add_f32 v{t(tile,1)}, v{t(tile,1)}, v{t(tile,2)}")
        for tile in range(4):
            a(f"v_sin_f32 v{t(tile,2)}, v{t(tile,1)}")
            a(f"v_cos_f32 v{t(tile,1)}, v{t(tile,1)}")
            if tile < 3:
                a(f"v_mul_f32 v{t(tile,3)}, v{cr}, v{t(tile,0)}")
                a(f"v_mul_f32 v{t(tile,4)}, v{ci}, v{t(tile,0)}")
        for tile in range(3):
            a(f"v_mul_f32 v{t(tile,0)}, v{t(tile,3)}, v{t(tile,1)}")
            a(f"v_mul_f32 v{t(tile,5)}, v{t(tile,3)}, v{t(tile,2)}")
        a(f"v_mul_f32 v{t(3,1)}, v{t(3,0)}, v{t(3,1)}")
        a(f"v_mul_f32 v{t(3,2)}, v{t(3,0)}, v{t(3,2)}")
        for tile in range(3):
            a(f"v_fma_f32 v{t(tile,0)}, -v{t(tile,4)}, v{t(tile,2)}, v{t(tile,0)}")
            a(f"v_fma_f32 v{t(tile,5)}, -v{t(tile,4)}, v{t(tile,1)}, -v{t(tile,5)}")
        a(f"v_cvt_pk_f16_f32 v{FR+12+i}, v{t(3,1)}, v{t(3,2)}")
        for tile in range(3):
            a(f"v_cvt_pk_f16_f32 v{FR+4*tile+i}, v{t(tile,0)}, v{t(tile,5)}")
    for tile in range(3):
        a(f"v_mfma_f32_16x16x32_f16 v[{KA+4*tile}:{KA+4*tile+3}], v[{FR+4*tile}:{FR+4*tile+3}], v[{FR+12}:{FR+15}], v[{KA+4*tile}:{KA+4*tile+3}]")
    a("s_add_u32 s47, s47, 1")
    a("s_cmp_lt_u32 s47, 4")
    a("s_cbranch_scc1 K1_KG")
    a.label("K1_KGEND")
    stamp(a, 5)
    a("s_lshl_b32 s3, s44, 13")
    a(f"s_add_u32 s3, s3, {SD+4096}")
    a("v_lshlrev_b32 v16, 4, v2")
    a("v_add_u32 v17, s3, v16")
    a("s_sub_u32 s3, s3, 4096")
    a("v_lshlrev_b32 v18, 7, v4")
    a("v_lshl_add_u32 v18, v3, 1, v18")
    a("v_add_u32 v18, s3, v18")
    a.nop(4)
    lab = a.newlabel("K1_R1")
    a("s_cmp_eq_u32 s46, 0")
    a(f"s_cbranch_scc1 {lab}")
    for tile in range(3):
        a(f"ds_write_b128 v17, v[{KA+4*tile}:{KA+4*tile+3}] offset:{1024*tile}")
    a("s_waitcnt lgkmcnt(0)")
    a.label(lab)
    lds_arrive(a, 214, 215, 4)
    lds_poll(a, 214, 212, 4, 4, "K1_P3")
    lab = a.newlabel("K1_R2")
    a("s_cmp_lg_u32 s46, 0")
    a(f"s_cbranch_scc1 {lab}")
    for tile in range(3):
        a(f"ds_read_b128 v[{PP+4*tile}:{PP+4*tile+3}], v17 offset:{1024*tile}")
    a("s_waitcnt lgkmcnt(0)")
    for r in range(12):
        a(f"v_add_f32 v{KA+r}, v{KA+r}, v{PP+r}")
    for r in range(0, 12, 2):
        a(f"v_cvt_pk_f16_f32 v{KA+r}, v{KA+r}, v{KA+r+1}")
    for tile in range(3):
        for i in range(4):
            op = "ds_write_b16" if i % 2 == 0 else "ds_write_b16_d16_hi"
            a(f"{op} v18, v{KA+4*tile+(i//2)*2} offset:{512*tile+32*i}")
    a("s_waitcnt lgkmcnt(0)")
    a.label(lab)
    lds_arrive(a, 214, 215, 8)
    lds_poll(a, 214, 212, 8, 4, "K1_P4")
    a("v_subrev_u32 v12, 0x100, v0")
    a("v_lshlrev_b32 v12, 4, v12")
    a("s_lshl_b32 s3, s2, 13")
    a(f"s_add_u32 s3, s3, {KT_OFF}")
    a("s_add_u32 s47, s3, 4096")
    for ch in range(2):
        for e in range(8):
            op = "ds_read_u16" if e % 2 == 0 else "ds_read_u16_d16_hi"
            if ch == 1 and e == 7:
                a("s_waitcnt lgkmcnt(8)")
            a(f"{op} v{52+8*ch+4*(e%2)+e//2}, v{IDX+e} offset:{SD+8192*ch - 131072}")
    for ch in range(2):
        a(f"s_waitcnt lgkmcnt({8*(1-ch)})")
        for k in range(4):
            a(f"v_or_b32 v{52+8*ch+k}, v{52+8*ch+k}, v{56+8*ch+k}")
        a(f"buffer_store_dwordx4 v[{52+8*ch}:{55+8*ch}], v12, s[12:15], {'s3' if ch == 0 else 's47'} offen{WT}")


KD = """.section .rodata,"a"
.p2align 6
.amdhsa_kernel {name}
  .amdhsa_next_free_vgpr {vgpr}
  .amdhsa_next_free_sgpr 100
  .amdhsa_accum_offset {vgpr}
  .amdhsa_group_segment_fixed_size 0
  .amdhsa_kernarg_size 112
  .amdhsa_user_sgpr_count 2
  .amdhsa_user_sgpr_kernarg_segment_ptr 1
  .amdhsa_system_sgpr_workgroup_id_x 1
.end_amdhsa_kernel
"""


def main():
    out = sys.argv[1]
    which = sys.argv[2] if len(sys.argv) > 2 else "12"
    hdr = open(REF).read().split("; Override launch geometry")[0]
    s = hdr
    if "1" in which:
        s += f"; @launch kernel=k1_kernel grid=(256,1,1) block=(512,1,1) lds={LDS1}\n"
    if "2" in which:
        from gen2 import LDS2
        s += f"; @launch kernel=k2_kernel grid=(256,1,1) block=(512,1,1) lds={LDS2}\n"
    s += '.amdgcn_target "amdgcn-amd-amdhsa--gfx950"\n.text\n'
    kds = ""
    if "1" in which:
        a = Asm()
        gen_k1(a)
        s += ".globl k1_kernel\n.p2align 8\n.type k1_kernel,@function\n" + a.text()
        kds += KD.format(name="k1_kernel", vgpr=244)
    if "2" in which:
        from gen2 import gen_k2, VGPR2
        a = Asm()
        gen_k2(a)
        s += ".globl k2_kernel\n.p2align 8\n.type k2_kernel,@function\n" + a.text()
        kds += KD.format(name="k2_kernel", vgpr=VGPR2)
    s += kds
    open(out, "w").write(s)


if __name__ == "__main__":
    main()
```
